```python
import torch

def _softmax(x, axis=-1):
    return torch.softmax(x, dim=axis)
def _gelu(x):
    return torch.nn.functional.gelu(x, approximate="tanh")
def _silu(x):
    return torch.nn.functional.silu(x)
def _sigmoid(x):
    return torch.sigmoid(x)
def _layernorm(x, axis=-1, eps=1e-5):
    m = x.mean(dim=axis, keepdim=True)
    v = x.var(dim=axis, keepdim=True, unbiased=False)
    return (x - m) / torch.sqrt(v + eps)
def _scatter_add(tgt, idx, src, axis=0):
    return tgt.clone().index_add_(axis, idx, src)
def _segment_sum(src, seg, n):
    out = torch.zeros((n,) + src.shape[1:], dtype=src.dtype)
    return out.index_add_(0, seg, src)
def _pad(x, pw):
    flat = tuple(v for pair in reversed(pw) for v in pair)
    return torch.nn.functional.pad(x, flat)

kernel_name = 'sequential_preLN__sliding_block_cached__dense_activation_relu__decode'

def setup_inputs():

    _w = (lambda a: (lambda t: t.to(torch.bfloat16) if t.is_floating_point() else t)(torch.as_tensor(a)))
    def _A_setup():
        B, Sq, D = 1, 1, 640
        Hq, Hkv, Sk, Dh = 32, 32, 4096, 128
        assert Hq % Hkv == 0, (Hq, Hkv)
        return {
            "x": _w((lambda *s: torch.randn(*s, dtype=torch.bfloat16) * 0.05)(B, Sq, D)),
            "k_cache": _w((lambda *s: torch.randn(*s, dtype=torch.bfloat16) * 3.2)(B, Hkv, Sk, Dh)),
            "v_cache": _w((lambda *s: torch.randn(*s, dtype=torch.bfloat16) * 0.4)(B, Hkv, Sk, Dh)),
            "wq": _w((lambda *s: torch.randn(*s, dtype=torch.bfloat16) * 3.2)(D, Hq * Dh) * (D ** -0.5)),
            "wo": _w((lambda *s: torch.randn(*s, dtype=torch.bfloat16) * 0.4)(Hq * Dh, D) * ((Hq * Dh) ** -0.5)),
        }
    _A_in = _A_setup()

    def _B_setup():
        B, S, D, Dff = 1, 1, 640, 1728
        return {
            "x": _w((lambda *s: torch.randn(*s, dtype=torch.bfloat16) * 0.05)(B, S, D)),
            "w1": _w((lambda *s: torch.randn(*s, dtype=torch.bfloat16) * 0.05)(D, Dff)),
            "w2": _w((lambda *s: torch.randn(*s, dtype=torch.bfloat16) * 0.05)(Dff, D)),
        }
    _B_in = _B_setup()

    return {
        "A_x": _A_in["x"],
        "A_k_cache": _A_in["k_cache"],
        "A_v_cache": _A_in["v_cache"],
        "A_wq": _A_in["wq"],
        "A_wo": _A_in["wo"],
        "B_x": _B_in["x"],
        "B_w1": _B_in["w1"],
        "B_w2": _B_in["w2"],
    }

def reference(A_x, A_k_cache, A_v_cache, A_wq, A_wo, B_x, B_w1, B_w2):
    def _A_ref(x, k_cache, v_cache, wq, wo):
        B, Sq, D = x.shape
        Hq, Dh = 32, 128
        Hkv, Sk = k_cache.shape[1], k_cache.shape[2]
        W = min(4096, max(256, Sk // 4))
        rep = Hq // Hkv
        q = (lambda x, *d: x.permute(*d))((x @ wq).reshape(B, Sq, Hq, Dh), 0, 2, 1, 3)
        k = (lambda x, n, axis: torch.repeat_interleave(x, n, dim=axis))(k_cache[:, :, Sk - W:, :], rep, axis=1)
        v = (lambda x, n, axis: torch.repeat_interleave(x, n, dim=axis))(v_cache[:, :, Sk - W:, :], rep, axis=1)
        scores = torch.einsum("bhqd,bhkd->bhqk", q, k) * (Dh ** -0.5)
        p = _softmax(scores, axis=-1)
        o = torch.einsum("bhqk,bhkd->bhqd", p, v)
        return (lambda x, *d: x.permute(*d))(o, 0, 2, 1, 3).reshape(B, Sq, Hq * Dh) @ wo

    def _B_ref(x, w1, w2):
        h = torch.einsum("bsd,df->bsf", x, w1)
        zero = torch.zeros_like(h)
        h = torch.maximum(h, zero)
        return torch.einsum("bsf,fd->bsd", h, w2)

    x = A_x
    h = x + _A_ref(_layernorm(x, axis=-1), A_k_cache, A_v_cache, A_wq, A_wo)
    h2 = h + _B_ref(_layernorm(h, axis=-1), B_w1, B_w2)
    return h2
```

```python
NAME = "sequential_preLN__sliding_block_cached__dense_activation_relu__decode"
HDR = """; Kernarg layout for this problem (88 bytes, ptrs only, base s[0:1]):
"""
class Asm:
    def __init__(self):
        self.lines = []
        self.nlab = 0
    def __call__(self, s=""):
        for l in s.split("\n"):
            self.lines.append("    " + l.strip() if l.strip() and not l.strip().endswith(":") else l.strip())
    def label(self, base="L"):
        self.nlab += 1
        return f"{base}_{self.nlab}"
    def text(self):
        return "\n".join(self.lines) + "\n"

def wrap(body, grid, block, lds, vgpr, sgpr=102, accum=None, name=None):
    name = name or NAME + "_kernel"
    if accum is None:
        accum = min(256, (vgpr + 3) // 4 * 4)
    return (HDR + f"; @launch grid=({grid},1,1) block=({block},1,1) lds={lds}\n"
        + f""".amdgcn_target "amdgcn-amd-amdhsa--gfx950"
.text
.globl {name}
.p2align 8
.type {name},@function
{name}:
""" + body + f"""
.section .rodata,"a"
.p2align 6
.amdhsa_kernel {name}
  .amdhsa_next_free_vgpr {vgpr}
  .amdhsa_next_free_sgpr {sgpr}
  .amdhsa_accum_offset {accum}
  .amdhsa_group_segment_fixed_size 0
  .amdhsa_kernarg_size 88
  .amdhsa_user_sgpr_count 2
  .amdhsa_user_sgpr_kernarg_segment_ptr 1
  .amdhsa_system_sgpr_workgroup_id_x 1
.end_amdhsa_kernel
""")
```

```python
import re
TRANS = ("v_exp_f32","v_log_f32","v_rcp_f32","v_rsq_f32","v_sqrt_f32","v_sin_f32","v_cos_f32")
def regs(op):
    op = op.strip()
    m = re.fullmatch(r"-?\|?([vsa])(\d+)\|?", op)
    if m: return [(m.group(1), int(m.group(2)))]
    m = re.fullmatch(r"-?([vsa])\[(\d+):(\d+)\]", op)
    if m: return [(m.group(1), k) for k in range(int(m.group(2)), int(m.group(3)) + 1)]
    if op == "vcc": return [("s", 106), ("s", 107)]
    if op == "vcc_lo": return [("s", 106)]
    if op == "vcc_hi": return [("s", 107)]
    if op == "exec": return [("s", 126), ("s", 127)]
    if op == "exec_lo": return [("s", 126)]
    if op == "exec_hi": return [("s", 127)]
    if op == "m0": return [("s", 124)]
    return []
def split_ops(rest):
    out = []; depth = 0; cur = ""
    for ch in rest:
        if ch == "[": depth += 1
        if ch == "]": depth -= 1
        if ch == "," and depth == 0: out.append(cur.strip()); cur = ""
        else: cur += ch
    out.append(cur.strip())
    mods = ""
    if out:
        p = out[-1].split(None, 1)
        if len(p) == 2: out[-1] = p[0]; mods = p[1]
    return out, mods
class I: pass
def parse(line):
    s = line.split(";")[0].strip()
    if not s or s.endswith(":") or s.startswith("."): return None
    p = s.split(None, 1)
    i = I(); i.mn = p[0]; rest = p[1] if len(p) > 1 else ""
    ops, mods = split_ops(rest) if rest else ([], "")
    i.ops = ops; i.mods = mods
    mn = i.mn
    i.valu = mn.startswith("v_") and not mn.startswith("v_mfma")
    i.mfma = mn.startswith("v_mfma")
    i.vmem = mn.startswith(("buffer_", "global_"))
    i.ds = mn.startswith("ds_")
    i.salu = mn.startswith("s_")
    i.dpp = "_dpp" in mn
    i.trans = any(mn.startswith(t) for t in TRANS)
    i.perml = mn.startswith("v_permlane")
    i.rdl = mn.startswith(("v_readlane", "v_readfirstlane"))
    i.sdwa = "_sdwa" in mn or ("op_sel" in mods and not mn.startswith("v_pk"))
    i.states = 1
    i.w = []; i.r = []; i.A = []; i.C = []; i.sdata = []
    R = [regs(o) for o in ops]
    flat = lambda L: [x for l in L for x in l]
    if mn == "s_nop": i.states = int(ops[0], 0) + 1
    elif i.mfma:
        i.w = R[0]; i.A = R[1] + R[2]; i.C = R[3]; i.r = i.A + i.C
        i.passes = 4 if "16x16x32" in mn else 8
    elif i.valu:
        if i.perml and "swap" in mn: i.w = R[0] + R[1]; i.r = R[0] + R[1]
        elif mn.startswith("v_cmpx"): i.w = regs("exec"); i.r = flat(R)
        else:
            i.w = R[0]; i.r = flat(R[1:])
            if i.dpp or mn.startswith(("v_fmac", "v_mac", "v_dot2c", "v_writelane")) or "d16" in mn or i.sdwa: i.r = i.r + R[0]
            if mn.startswith("v_cndmask") and len(ops) == 3: i.r = i.r + regs("vcc")
    elif i.vmem:
        i.lds = "_lds_" in mn or " lds" in (" " + mods)
        if "load" in mn and not i.lds: i.w = R[0]; i.r = flat(R[1:])
        else:
            i.r = flat(R)
            if "store" in mn and ("x4" in mn or "x3" in mn):
                i.sdata = R[1] if mn.startswith("global_") else R[0]
        if i.lds: i.r = i.r + regs("m0")
    elif i.ds:
        if mn.startswith(("ds_read", "ds_bpermute", "ds_permute", "ds_swizzle")): i.w = R[0]; i.r = flat(R[1:])
        else: i.r = flat(R)
    elif i.salu:
        if mn.startswith(("s_cmp", "s_waitcnt", "s_cbranch", "s_branch", "s_barrier", "s_endpgm", "s_sleep", "s_setprio", "s_bitcmp")):
            i.r = flat(R)
        else:
            i.w = R[0] if R else []; i.r = flat(R[1:])
            if "saveexec" in mn: i.w = i.w + regs("exec")
    return i
def need(p, c):
    n = 0
    pw = set(p.w); cr = set(c.r); cw = set(c.w)
    pwv = {x for x in pw if x[0] != "s"}; pws = {x for x in pw if x[0] == "s"}
    if p.valu:
        if pws & cr:
            if c.vmem: n = max(n, 5)
            if c.valu: n = max(n, 4 if c.rdl or c.mn.startswith("v_writelane") else 2)
        if pws & set(regs("exec")):
            if c.dpp: n = max(n, 5)
            if c.mfma or c.perml or c.rdl: n = max(n, 4)
        if pwv & cr:
            if c.dpp or c.perml or c.mfma: n = max(n, 2)
            if c.rdl: n = max(n, 1)
            if p.trans and (c.valu and not c.trans or c.vmem or c.ds): n = max(n, 1)
            if p.sdwa and c.valu: n = max(n, 1)
            if p.mn.startswith("v_dot") and not (c.mn == p.mn and not (pwv & set(regs(c.ops[1]) + regs(c.ops[2])))): n = max(n, 3)
    if p.salu and ("s", 124) in pw and c.vmem and getattr(c, "lds", False): n = max(n, 1)
    if p.vmem and p.sdata and (set(p.sdata) & cw): n = max(n, 2)
    if p.mfma:
        big = {4: 8, 8: 12}[p.passes]; ov = {4: 6, 8: 10}[p.passes]; war = {4: 3, 8: 7}[p.passes]
        if c.mfma:
            if pw & set(c.A): n = max(n, big)
            if pw & set(c.C) and not (p.w == c.C and p.passes == c.passes): n = max(n, ov)
            if pw & cw and not (pw & set(c.C)): n = max(n, big)
        elif (c.valu or c.vmem or c.ds) and (pw & (cr | cw)): n = max(n, big)
        if c.valu and (set(p.C) & cw): n = max(n, war)
        if c.valu and (set(p.A) & cw): n = max(n, 1)
    return n
def pad(lines):
    out = []; hist = []
    for line in lines:
        i = parse(line)
        if i is None:
            out.append(line); continue
        req = 0; dist = 0
        for p in reversed(hist):
            k = need(p, i) - dist
            req = max(req, k)
            dist += p.states
            if dist > 20: break
        while req > 0:
            k = min(req, 8)
            nop = parse(f"s_nop {k-1}"); out.append(f"    s_nop {k-1}"); hist.append(nop); req -= k
        out.append(line); hist.append(i)
    return out
```

```python
import sys, struct
from asmlib import Asm, wrap, NAME
import haz

def f2u(x): return struct.unpack("<I", struct.pack("<f", x))[0]
QP, OP, YP, PP = 0x10000, 0x40000, 0x70000, 0x80000
QRED, QVEC, MBUF, OBUF, OVEC, YRED, HVEC, HRED, CSRED, STAT = 0x0, 0x800, 0x900, 0xA00, 0x1300, 0x1700, 0x1900, 0x1E00, 0x2000, 0x2200
WB1 = 0x2400; WB2 = WB1 + 40960; LDSSZ = WB2 + 40960
X, K, V, WQ, WO, W1, W2, OUT, DBG, WS = "s[4:5]", "s[6:7]", "s[8:9]", "s[10:11]", "s[12:13]", "s[16:17]", "s[18:19]", "s[20:21]", "s[22:23]", "s[24:25]"
sW, sTAG, sG, sI, sH, sJ = "s26", "s27", "s28", "s29", "s30", "s31"
sPA, sPB, sPC, sUN = "s40", "s41", "s42", "s43"
sODD, sHI = "s[44:45]", "s[46:47]"
sCNT, sIDX, sROLE, sL2E, sSCL = "s48", "s49", "s50", "s51", "s52"
sSTA, sSTB = "s53", "s56"
sRB = "s[54:55]"; sEXA, sEXB = "s[58:59]", "s[90:91]"
sEXO = "s[92:93]"
DPPF = "row_mask:0xf bank_mask:0xf"
def vr(b, n=4): return f"v[{b}:{b+n-1}]"

def gen(nva=4, nvb=2, waitk=0, stamps=True, spin=0x8000, o=None):
    o = o or {}
    a = Asm()
    nst = [0]
    def stamp(k):
        if stamps:
            a(f"s_memrealtime s[{60+2*k}:{61+2*k}]")
    def allred(v, t, op="add", rows4=True):
        for r in (8, 4, 2, 1):
            a(f"v_{op}_f32_dpp v{v}, v{v}, v{v} row_ror:{r} {DPPF}")
        a(f"v_mov_b32 v{t}, v{v}\nv_permlane16_swap_b32 v{v}, v{t}\nv_{op}_f32 v{v}, v{v}, v{t}")
        if rows4:
            a(f"v_mov_b32 v{t}, v{v}\nv_permlane32_swap_b32 v{v}, v{t}\nv_{op}_f32 v{v}, v{v}, v{t}")
    def pack(dst, d0, d1, d2, d3):
        a(f"v_perm_b32 v{dst}, v{d0}, v{d3}, {sPA}\nv_perm_b32 v{dst+1}, v{d1}, v{d3}, {sPB}\nv_perm_b32 v{dst+2}, v{d2}, v{d3}, {sPC}")
    def check(acc, g, first):
        if first: a(f"v_xor_b32 v{acc}, {sTAG}, v{g+3}")
        else: a(f"v_bitop3_b32 v{acc}, v{acc}, v{g+3}, {sTAG} bitop3:0xf6")
    def unpack(g):
        a(f"v_perm_b32 v{g+3}, v{g+1}, v{g}, {sUN}\nv_lshl_or_b32 v{g+3}, v{g+2}, 24, v{g+3}")
    def bf(v, t=None):
        a(f"v_cvt_pk_bf16_f32 v{v}, v{v}, v{v}\nv_and_b32 v{v}, 0xffff0000, v{v}")

    L, N, S = 1, 3, 4
    WQD, KD, VD = 8, 28, 60
    XD, XR, XU = 92, 98, 100
    MK = 104
    AT = 108
    FR = 140
    aXA, aXB, aXR, aXU, aWQ, aK, aV = 220, 221, 222, 223, 224, 229, 230
    aRED, aRD8, aQS, aQG, aQW, aFR, aOW, aORD, aOS, aRA = 231, 232, 233, 234, 235, 236, 237, 238, 239, 240
    ST = 244
    T0 = 248
    ACC = 5

    a(f"""s_load_dwordx16 s[4:19], s[0:1], 0
    s_load_dwordx4 s[20:23], s[0:1], 64
    s_load_dwordx2 s[24:25], s[0:1], 80
    s_cmp_ge_u32 s2, 0x100
    s_cbranch_scc1 L_END""")
    if stamps:
        for k in range(1, 15): a(f"s_mov_b64 s[{60+2*k}:{61+2*k}], 0")
    stamp(0)
    a(f"""v_lshrrev_b32 v2, 6, v0
    v_and_b32 v{L}, 63, v0
    s_and_b32 {sG}, s2, 7
    v_readfirstlane_b32 {sW}, v2
    s_lshr_b32 {sI}, s2, 3
    s_and_b32 {sH}, {sI}, 3
    s_lshl_b32 s32, {sG}, 2
    s_add_u32 {sH}, {sH}, s32
    s_lshr_b32 {sJ}, {sI}, 2
    v_and_b32 v{N}, 15, v0
    v_bfe_u32 v{S}, v0, 4, 2
    s_mul_i32 s33, {sJ}, 80
    s_mul_i32 s34, {sW}, 20
    s_add_u32 s33, s33, s34
    s_lshl_b32 s35, s33, 1
    s_lshl_b32 s36, s33, 13
    s_lshl_b32 s34, {sH}, 8
    s_add_u32 s36, s36, s34
    v_lshlrev_b32 v{aXA}, 4, v{L}
    v_lshlrev_b32 v{aXB}, 2, v{L}
    v_lshl_add_u32 v{aXR}, v{S}, 3, s35
    v_lshl_add_u32 v{aXU}, v{S}, 1, s35
    v_lshl_add_u32 v{T0}, v{N}, 4, s36
    v_lshl_add_u32 v{aWQ}, v{S}, 15, v{T0}
    v_add_u32 v{aWQ+1}, 0x2000, v{aWQ}
    v_add_u32 v{aWQ+2}, 0x4000, v{aWQ}
    v_add_u32 v{aWQ+3}, 0x6000, v{aWQ}
    v_lshl_add_u32 v{aWQ+4}, v{S}, 13, v{T0}
    v_add_u32 v{aWQ+4}, 0x20000, v{aWQ+4}
    s_lshl_b32 s37, {sH}, 20
    s_lshl_b32 s34, {sJ}, 15
    s_add_u32 s37, s37, s34
    s_lshl_b32 s34, {sW}, 13
    s_add_u32 s37, s37, s34
    s_add_u32 s37, s37, {3072*256}
    s_add_u32 s38, s37, 4096
    v_lshl_add_u32 v{aK}, v{N}, 8, s38
    v_lshl_add_u32 v{aK}, v{S}, 4, v{aK}
    v_and_b32 v{T0}, 1, v{S}
    v_lshrrev_b32 v{T0+1}, 1, v{S}
    v_lshl_add_u32 v{aV}, v{N}, 4, s37
    v_lshl_add_u32 v{aV}, v{T0}, 12, v{aV}
    v_lshl_add_u32 v{aV}, v{T0+1}, 11, v{aV}
    s_waitcnt lgkmcnt(0)
    global_load_dwordx4 {vr(XD)}, v{aXA}, {X}
    global_load_dword v{XD+4}, v{aXB}, {X} offset:1024
    global_load_dwordx2 {vr(XR,2)}, v{aXR}, {X}
    global_load_ushort v{XU}, v{aXU}, {X} offset:32""")
    for t in range(5):
        a(f"global_load_dwordx4 {vr(WQD+4*t)}, v{aWQ+t}, {WQ} nt")
    for T in range(2):
        for c in range(4):
            a(f"global_load_dwordx4 {vr(KD+16*T+4*c)}, v{aK}, {K} offset:{(T-1)*4096+64*c} nt")
    a(f"s_load_dword {sTAG}, {WS}, 0")
    stamp(1)
    a(f"""s_mov_b32 {sPA}, 0x07060501
    s_mov_b32 {sPB}, 0x07060502
    s_mov_b32 {sPC}, 0x07060503
    s_mov_b32 {sUN}, 0x0c04000c
    s_mov_b32 s44, 0xffff0000
    s_mov_b32 s45, 0xffff0000
    s_mov_b32 s46, 0
    s_mov_b32 s47, -1
    s_mov_b32 {sL2E}, {f2u(1.4426950408889634)}
    s_mov_b32 {sSCL}, {f2u(128 ** -0.5)}""")
    a(f"""v_and_b32 v{T0}, 1, v{N}
    v_lshlrev_b32 v{T0}, 4, v{T0}
    v_mov_b32 v{T0+1}, 0xffff
    v_lshlrev_b32 v{T0}, v{T0}, v{T0+1}
    v_lshrrev_b32 v{T0+1}, 1, v{N}""")
    for r in range(4):
        a(f"v_cmp_eq_u32 vcc, {r}, v{T0+1}\nv_cndmask_b32 v{MK+r}, 0, v{T0}, vcc")
    a(f"""s_lshl_b32 s32, {sW}, 9
    v_lshl_add_u32 v{aRED}, v{N}, 5, s32
    v_lshl_add_u32 v{aRED}, v{S}, 4, v{aRED}
    s_lshl_b32 s32, {sW}, 7
    v_lshl_add_u32 v{aRD8}, v{L}, 4, s32              ; w*128 + l*16 (lanes<8)
    s_lshl_b32 s33, {sH}, 3
    s_add_u32 s33, s33, {sJ}                           ; head*8+j
    s_lshl_b32 s34, s33, 9
    s_add_u32 s34, s34, {QP}
    v_add_u32 v{aQS}, s34, v{aRD8}
    s_lshl_b32 s34, {sH}, 12
    s_add_u32 s34, s34, {QP}
    s_add_u32 s34, s34, s32
    v_lshrrev_b32 v{T0}, 3, v{L}
    v_and_b32 v{T0+1}, 7, v{L}
    v_lshl_add_u32 v{aQG}, v{T0}, 9, s34
    v_lshl_add_u32 v{aQG}, v{T0+1}, 4, v{aQG}
    s_lshl_b32 s34, {sW}, 6
    s_add_u32 s34, s34, {QVEC}
    v_lshl_add_u32 v{aQW}, v{T0+1}, 3, s34
    v_and_b32 v{T0}, 1, v{S}
    v_lshl_add_u32 v{aQW}, v{T0}, 2, v{aQW}
    v_and_b32 v{T0}, 2, v{S}
    v_add_u32 v{aQW}, v{T0}, v{aQW}
    v_lshlrev_b32 v{aFR}, 4, v{S}                      ; 16*s
    s_mul_i32 s34, {sW}, 528
    s_add_u32 s34, s34, {OBUF}
    v_lshl_add_u32 v{aOW}, v{N}, 5, s34
    v_lshl_add_u32 v{aOW}, v{S}, 4, v{aOW}
    s_add_u32 s34, s34, 512
    v_mov_b32 v{T0}, s34
    v_cndmask_b32 v{aOW}, v{aOW}, v{T0}, {sHI}
    v_mov_b32 v{T0}, 512
    v_cmp_gt_u32 vcc, 8, v{L}
    v_cndmask_b32 v{aORD}, v{T0}, v{aRD8}, vcc
    v_lshl_add_u32 v{T0}, v{L}, 4, v{T0}
    v_subrev_u32 v{T0}, 128, v{T0}                     ; 512 + (l-8)*16
    v_cndmask_b32 v{aOS}, v{T0}, v{aRD8}, vcc
    s_mul_i32 s34, s33, 640
    s_add_u32 s34, s34, {OP}
    v_add_u32 v{aOS}, s34, v{aOS}
    s_movk_i32 s92, 0xff
    s_cmp_eq_u32 {sW}, 0
    s_cselect_b32 s92, 0xffff, s92
    s_mov_b32 s93, 0""")
    a(f"""s_mov_b32 {sROLE}, 0
    s_mov_b32 {sIDX}, {sI}
    s_mov_b64 {sRB}, {WO}
    s_mov_b64 {sEXA}, -1
    s_mov_b64 {sEXB}, 1
    s_mov_b32 {sSTA}, {16*1280}
    s_mov_b32 {sSTB}, 0
    s_mov_b32 s32, 1280
    s_lshl_b32 s33, {sG}, 2
    s_add_u32 s33, s33, {sW}
    s_mul_i32 s33, s33, {128*1280}
    s_lshl_b32 s34, {sI}, 6
    s_add_u32 s33, s33, s34
    s_cmp_lt_u32 {sI}, 20
    s_cbranch_scc1 L_ROLE_DONE
    s_sub_u32 s34, {sI}, 20
    s_lshr_b32 s35, s34, 1
    s_lshl_b32 s35, s35, 3
    s_add_u32 s35, s35, {sG}
    s_cmp_lt_u32 s35, 27
    s_cbranch_scc0 L_ROLE_NOTMLP
    s_and_b32 s34, s34, 1
    s_lshl_b32 s35, s35, 1
    s_add_u32 {sIDX}, s35, s34
    s_mov_b32 {sROLE}, 1
    s_mov_b64 {sRB}, {W1}
    s_mov_b64 {sEXB}, -1
    s_mov_b32 {sSTA}, {16*3456}
    s_mov_b32 {sSTB}, {16*3456}
    s_mov_b32 s32, 3456
    s_mul_i32 s33, {sW}, {160*3456}
    s_lshl_b32 s34, {sIDX}, 6
    s_add_u32 s33, s33, s34
    s_branch L_ROLE_DONE
L_ROLE_NOTMLP:
    s_mov_b64 {sEXA}, 1
    s_mov_b32 {sSTA}, 0
    s_mov_b32 s33, 0
    s_mov_b32 {sROLE}, 3
    s_cmp_lt_u32 {sI}, 28
    s_cbranch_scc1 L_ROLE_DONE
    s_sub_u32 s34, {sI}, 28
    s_lshl_b32 s34, s34, 3
    s_add_u32 {sIDX}, s34, {sG}
    s_cmp_lt_u32 {sIDX}, 20
    s_cselect_b32 {sROLE}, 2, 3
L_ROLE_DONE:
    v_lshrrev_b32 v{T0}, 2, v{L}
    v_mul_u32_u24 v{aRA}, s32, v{T0}
    v_and_b32 v{T0}, 3, v{L}
    v_lshl_add_u32 v{aRA}, v{T0}, 4, v{aRA}
    v_add_u32 v{aRA}, s33, v{aRA}""")
    U = AT
    a("s_waitcnt vmcnt(15)")
    for k in range(5):
        a(f"v_lshlrev_b32 v{U+2*k}, 16, v{XD+k}\nv_and_b32 v{U+2*k+1}, 0xffff0000, v{XD+k}")
    a(f"""v_pk_add_f32 v[{T0}:{T0+1}], v[{U}:{U+1}], v[{U+2}:{U+3}]
    v_pk_add_f32 v[{T0+2}:{T0+3}], v[{U+4}:{U+5}], v[{U+6}:{U+7}]
    v_pk_add_f32 v[{T0}:{T0+1}], v[{T0}:{T0+1}], v[{U+8}:{U+9}]
    v_pk_add_f32 v[{T0}:{T0+1}], v[{T0}:{T0+1}], v[{T0+2}:{T0+3}]
    v_add_f32 v{T0}, v{T0}, v{T0+1}""")
    allred(T0, T0+1)
    a(f"v_mul_f32 v{T0}, {f2u(1/640)}, v{T0}")
    for k in range(10):
        a(f"v_sub_f32 v{U+k}, v{U+k}, v{T0}")
    a(f"v_mul_f32 v{T0+2}, v{U}, v{U}\nv_mul_f32 v{T0+3}, v{U+1}, v{U+1}")
    for k in range(2, 10):
        a(f"v_fmac_f32 v{T0+2+(k&1)}, v{U+k}, v{U+k}")
    a(f"v_add_f32 v{T0+2}, v{T0+2}, v{T0+3}")
    allred(T0+2, T0+3)
    a(f"v_mul_f32 v{T0+2}, {f2u(1/640)}, v{T0+2}")
    bf(T0); bf(T0+2)
    a(f"v_add_f32 v{T0+2}, {f2u(1e-5)}, v{T0+2}")
    bf(T0+2)
    a(f"v_sqrt_f32 v{T0+2}, v{T0+2}")
    bf(T0+2)
    a(f"v_rcp_f32 v{T0+2}, v{T0+2}")
    a("s_waitcnt vmcnt(13)")
    Y = AT + 20
    a(f"""v_lshlrev_b32 v{Y}, 16, v{XR}
    v_and_b32 v{Y+1}, 0xffff0000, v{XR}
    v_lshlrev_b32 v{Y+2}, 16, v{XR+1}
    v_and_b32 v{Y+3}, 0xffff0000, v{XR+1}
    v_lshlrev_b32 v{Y+4}, 16, v{XU}""")
    for t in range(5): a(f"v_sub_f32 v{Y+t}, v{Y+t}, v{T0}")
    for t in range(5): bf(Y+t)
    for t in range(5): a(f"v_mul_f32 v{Y+t}, v{Y+t}, v{T0+2}")
    for t in range(5): a(f"v_cvt_pk_bf16_f32 v{Y+t}, v{Y+t}, v{Y+t}")
    for t in range(5):
        for r in range(4): a(f"v_and_b32 v{AT+4*t+r}, v{Y+t}, v{MK+r}")
    stamp(2)
    D = AT + 28
    for t in range(5):
        a(f"s_waitcnt vmcnt({12-t})")
        a(f"v_mfma_f32_16x16x32_bf16 {vr(D)}, {vr(AT+4*t)}, {vr(WQD+4*t)}, {'0' if t == 0 else vr(D)}")
    def vload(u): a(f"global_load_dwordx4 {vr(VD+4*u)}, v{aV}, {V} offset:{256*u} nt")
    for u in range(nva): vload(u)
    a(f"""s_mov_b32 exec_hi, 0
    ds_write_b128 v{aRED}, {vr(D)} offset:{QRED}
    s_waitcnt lgkmcnt(0)
    s_add_u32 {sTAG}, {sTAG}, 0x01010101
    s_mov_b64 exec, -1
    v_mov_b32 v{ST+3}, {sTAG}
    s_mov_b64 exec, 0xff
    s_barrier""")
    for k in range(4): a(f"ds_read_b128 {vr(AT+4*k)}, v{aRD8} offset:{QRED+512*k}")
    a(f"""s_waitcnt lgkmcnt(0)
    v_pk_add_f32 v[{AT}:{AT+1}], v[{AT}:{AT+1}], v[{AT+4}:{AT+5}]
    v_pk_add_f32 v[{AT+2}:{AT+3}], v[{AT+2}:{AT+3}], v[{AT+6}:{AT+7}]
    v_pk_add_f32 v[{AT+8}:{AT+9}], v[{AT+8}:{AT+9}], v[{AT+12}:{AT+13}]
    v_pk_add_f32 v[{AT+10}:{AT+11}], v[{AT+10}:{AT+11}], v[{AT+14}:{AT+15}]
    v_pk_add_f32 v[{AT}:{AT+1}], v[{AT}:{AT+1}], v[{AT+8}:{AT+9}]
    v_pk_add_f32 v[{AT+2}:{AT+3}], v[{AT+2}:{AT+3}], v[{AT+10}:{AT+11}]""")
    pack(ST, AT, AT+1, AT+2, AT+3)
    a(f"global_store_dwordx4 v{aQS}, {vr(ST)}, {WS} sc1\ns_mov_b64 exec, -1")
    stamp(3)
    for u in range(nva, nva + nvb): vload(u)
    nrest = 8 - nva - nvb
    a(f"s_waitcnt vmcnt({nva + 1 + nvb + waitk})")
    stamp(4)
    G = AT
    a(f"global_load_dwordx4 {vr(G)}, v{aQG}, {WS} sc1")
    for u in range(nva + nvb, 8): vload(u)
    a(f"""s_mul_i32 s32, {sW}, 10240
    s_add_u32 m0, s32, {WB1}
    s_mov_b64 exec, {sEXA}""")
    for u in range(10):
        if u == 8: a(f"s_mov_b64 exec, {sEXB}")
        a(f"global_load_lds_dwordx4 v{aRA}, {sRB} nt")
        if u < 9:
            a(f"s_add_u32 m0, m0, 1024\ns_add_u32 s54, s54, {sSTA if u < 7 else sSTB}\ns_addc_u32 s55, s55, 0")
    a(f"""s_mov_b64 exec, -1
    s_movk_i32 {sCNT}, {spin-1}
    s_waitcnt vmcnt({nrest + 10})
    v_cmp_ne_u32 vcc, {sTAG}, v{G+3}
    s_cbranch_vccz L_QOK
L_QPOLL:
    global_load_dwordx4 {vr(G)}, v{aQG}, {WS} sc1
    s_sub_u32 {sCNT}, {sCNT}, 1
    s_cbranch_scc1 L_QOK
    s_waitcnt vmcnt(0)
    v_cmp_ne_u32 vcc, {sTAG}, v{G+3}
    s_cbranch_vccnz L_QPOLL
L_QOK:""")
    stamp(5)
    unpack(G)
    a(f"""v_permlane32_swap_b32 v{G}, v{G+1}
    v_permlane32_swap_b32 v{G+2}, v{G+3}
    v_add_f32 v{G}, v{G}, v{G+1}
    v_add_f32 v{G+2}, v{G+2}, v{G+3}
    v_permlane16_swap_b32 v{G}, v{G+2}
    v_add_f32 v{G}, v{G}, v{G+2}
    v_add_f32_dpp v{G}, v{G}, v{G} row_ror:8 {DPPF}
    v_cvt_pk_bf16_f32 v{G}, v{G}, v{G}
    ds_write_b16 v{aQW}, v{G}
    s_waitcnt lgkmcnt(0)
    s_barrier""")
    Q = WQD
    for c in range(4): a(f"ds_read_b128 {vr(Q+4*c)}, v{aFR} offset:{QVEC+64*c}")
    if waitk: a(f"s_waitcnt vmcnt({nrest + 10})")
    D0, D1 = T0, T0 + 4
    for c in range(4):
        a(f"s_waitcnt lgkmcnt({0 if stamps else 3-c})")
        a(f"v_mfma_f32_16x16x32_bf16 {vr(D0)}, {vr(Q+4*c)}, {vr(KD+4*c)}, {'0' if c == 0 else vr(D0)}")
        a(f"v_mfma_f32_16x16x32_bf16 {vr(D1)}, {vr(Q+4*c)}, {vr(KD+16+4*c)}, {'0' if c == 0 else vr(D1)}")
    SC, SR, MX, PK, LS, TT = 24, 25, 26, 27, 6, 7
    a(f"v_cndmask_b32 v{SC}, v{D0}, v{D1}, {sODD}")
    bf(SC)
    a(f"v_mul_f32 v{SC}, {sSCL}, v{SC}")
    bf(SC)
    a(f"""v_mov_b32 v{SR}, v{SC}
    v_max_f32_dpp v{MX}, v{SC}, v{SC} row_ror:8 {DPPF}
    v_mov_b32_dpp v{SR}, v{SC} row_ror:8 row_mask:0xc bank_mask:0xf""")
    for r in (4, 2, 1): a(f"v_max_f32_dpp v{MX}, v{MX}, v{MX} row_ror:{r} {DPPF}")
    a(f"""v_mov_b32 v{TT}, v{MX}
    v_permlane16_swap_b32 v{MX}, v{TT}
    v_max_f32 v{MX}, v{MX}, v{TT}
    v_sub_f32 v{SR}, v{SR}, v{MX}
    v_mul_f32 v{SR}, {sL2E}, v{SR}
    v_exp_f32 v{SR}, v{SR}
    s_lshl_b32 s32, {sW}, 2
    v_mov_b32 v{TT}, s32
    v_cvt_pk_bf16_f32 v{PK}, v{SR}, v{SR}
    s_mov_b64 exec, 1
    ds_write_b32 v{TT}, v{MX} offset:{MBUF}
    s_mov_b64 exec, -1
    v_and_b32 v{LS}, 0xffff0000, v{PK}""")
    lsum = [f"v_add_f32_dpp v{LS}, v{LS}, v{LS} row_ror:{r} {DPPF}" for r in (8, 4, 2, 1)] + [f"v_mov_b32 v{TT}, v{LS}", f"v_permlane16_swap_b32 v{LS}, v{TT}", f"v_add_f32 v{LS}, v{LS}, v{TT}"]
    for u in range(8):
        for r in range(4): a(f"v_and_b32_dpp v{AT+4*u+r}, v{PK}, v{MK+r} row_newbcast:{u} {DPPF}")
        if u < len(lsum): a(lsum[u])
    stamp(6)
    DO = T0
    for u in range(8):
        if u >= nva + nvb: a(f"s_waitcnt vmcnt({7 - u + 10})")
        a(f"v_mfma_f32_16x16x32_bf16 {vr(DO)}, {vr(AT+4*u)}, {vr(VD+4*u)}, {'0' if u == 0 else vr(DO)}")
    a(f"""s_mov_b32 exec_hi, 1
    v_cndmask_b32 v{DO}, v{DO}, v{LS}, {sHI}
    ds_write_b128 v{aOW}, {vr(DO)}
    v_mov_b32 v{TT}, 0
    s_waitcnt lgkmcnt(0)
    s_mov_b64 exec, {sEXO}
    s_barrier
    ds_read_b128 {vr(AT+16)}, v{TT} offset:{MBUF}""")
    for k in range(4): a(f"ds_read_b128 {vr(AT+4*k)}, v{aORD} offset:{OBUF+528*k}")
    M4 = AT + 16
    a(f"""s_waitcnt lgkmcnt({0 if stamps else 4})
    v_max3_f32 v{MX}, v{M4}, v{M4+1}, v{M4+2}
    v_max_f32 v{MX}, v{MX}, v{M4+3}""")
    for k in range(4): a(f"v_sub_f32 v{M4+k}, v{M4+k}, v{MX}")
    for k in range(4): a(f"v_mul_f32 v{M4+k}, {sL2E}, v{M4+k}")
    for k in range(4): a(f"v_exp_f32 v{M4+k}, v{M4+k}")
    a(f"""v_cmp_lt_u32 vcc, 7, v{L}
    s_waitcnt lgkmcnt(0)
    v_pk_mul_f32 v[{AT}:{AT+1}], v[{AT}:{AT+1}], v[{M4}:{M4+1}] op_sel_hi:[1,0]
    v_pk_mul_f32 v[{AT+2}:{AT+3}], v[{AT+2}:{AT+3}], v[{M4}:{M4+1}] op_sel_hi:[1,0]
    v_pk_fma_f32 v[{AT}:{AT+1}], v[{AT+4}:{AT+5}], v[{M4}:{M4+1}], v[{AT}:{AT+1}] op_sel:[0,1,0]
    v_pk_fma_f32 v[{AT+2}:{AT+3}], v[{AT+6}:{AT+7}], v[{M4}:{M4+1}], v[{AT+2}:{AT+3}] op_sel:[0,1,0]
    v_pk_fma_f32 v[{AT}:{AT+1}], v[{AT+8}:{AT+9}], v[{M4+2}:{M4+3}], v[{AT}:{AT+1}] op_sel_hi:[1,0,1]
    v_pk_fma_f32 v[{AT+2}:{AT+3}], v[{AT+10}:{AT+11}], v[{M4+2}:{M4+3}], v[{AT+2}:{AT+3}] op_sel_hi:[1,0,1]
    v_pk_fma_f32 v[{AT}:{AT+1}], v[{AT+12}:{AT+13}], v[{M4+2}:{M4+3}], v[{AT}:{AT+1}] op_sel:[0,1,0]
    v_pk_fma_f32 v[{AT+2}:{AT+3}], v[{AT+14}:{AT+15}], v[{M4+2}:{M4+3}], v[{AT+2}:{AT+3}] op_sel:[0,1,0]
    v_cndmask_b32 v{AT+1}, v{AT+1}, v{MX}, vcc""")
    pack(ST, AT, AT+1, AT+2, AT+3)
    a(f"global_store_dwordx4 v{aOS}, {vr(ST)}, {WS} sc1\ns_mov_b64 exec, -1")
    stamp(7)
    aT = aXA
    a(f"""v_bfe_u32 v{T0}, v{L}, 2, 2
    v_lshl_add_u32 v{T0}, v{S}, 3, v{T0}               ; 8s + r
    v_and_b32 v{T0+1}, 3, v{L}
    v_lshlrev_b32 v{T0+1}, 3, v{T0+1}                  ; cc*8
    s_mul_i32 s32, {sW}, 10240
    s_add_u32 s33, s32, {WB1}
    v_lshl_add_u32 v{aT}, v{T0}, 6, s33
    v_add_u32 v{aT}, v{T0+1}, v{aT}
    s_movk_i32 {sCNT}, {spin-1}
    s_cmp_eq_u32 {sROLE}, 1
    s_cbranch_scc1 L_MLP
    s_cmp_eq_u32 {sROLE}, 2
    s_cbranch_scc1 L_FIN
    s_cmp_eq_u32 {sROLE}, 3
    s_cbranch_scc1 L_DONE""")
    aPO, aPM, aVW, aVR, aYW, aYS = 221, 222, 223, 224, 225, 226
    a(f"""s_lshl_b32 s32, {sG}, 2
    s_add_u32 s32, s32, {sW}
    s_mul_i32 s32, s32, {8*640}
    s_add_u32 s32, s32, {OP}
    v_lshrrev_b32 v{T0}, 5, v{L}                       ; hf
    v_and_b32 v{T0+1}, 31, v{L}                        ; gq
    s_movk_i32 s33, 2560
    v_mul_u32_u24 v{aPO}, s33, v{T0}
    v_lshl_add_u32 v{aPO}, v{T0+1}, 4, v{aPO}
    v_add_u32 v{aPO}, s32, v{aPO}
    v_and_b32 v{T0+2}, 7, v{L}
    v_lshlrev_b32 v{T0+3}, 2, v{T0}
    v_xor_b32 v{T0+2}, v{T0+2}, v{T0+3}
    s_movk_i32 s33, 640
    v_mul_u32_u24 v{aPM}, s33, v{T0+2}
    v_add_u32 v{aPM}, s32, v{aPM}
    s_lshl_b32 s33, {sW}, 8
    s_add_u32 s33, s33, {OVEC}
    v_lshl_add_u32 v{aVW}, v{T0+1}, 3, s33
    v_add_u32 v{aVW}, v{T0+3}, v{aVW}
    v_add_u32 v{aVR}, s33, v{aFR}
    s_lshl_b32 s33, {sW}, 7
    v_add_u32 v{aYW}, s33, v{aFR}
    s_mul_i32 s33, {sG}, 2560
    s_lshl_b32 s34, {sIDX}, 7
    s_add_u32 s33, s33, s34
    s_add_u32 s33, s33, {YP}
    v_lshlrev_b32 v{aRD8}, 4, v{L}
    v_add_u32 v{aYS}, s33, v{aRD8}
    s_waitcnt vmcnt(1)""")
    for c in range(4):
        for cg in range(2):
            for hh in range(2):
                b = FR + 8*c + 4*cg + 2*hh
                a(f"ds_read_b64_tr_b16 v[{b}:{b+1}], v{aT} offset:{c*2048 + hh*256 + cg*32}")
    a("s_waitcnt lgkmcnt(0)")
    stamp(8)
    ML = AT + 16
    a("L_OPOLL:")
    a(f"global_load_dwordx4 {vr(ML)}, v{aPM}, {WS} offset:512 sc1")
    for i in range(4): a(f"global_load_dwordx4 {vr(AT+4*i)}, v{aPO}, {WS} offset:{640*i} sc1")
    a(f"""s_sub_u32 {sCNT}, {sCNT}, 1
    s_cbranch_scc1 L_OOK
    s_waitcnt vmcnt(0)""")
    check(ACC, ML, True)
    for i in range(4): check(ACC, AT+4*i, False)
    a(f"""v_cmp_ne_u32 vcc, 0, v{ACC}
    s_cbranch_vccnz L_OPOLL
L_OOK:""")
    stamp(9)
    F, FL = 24, 25
    ups = []
    for i in range(4):
        g = AT + 4*i
        ups += [f"v_perm_b32 v{g+3}, v{g+1}, v{g}, {sUN}", f"v_lshl_or_b32 v{g+3}, v{g+2}, 24, v{g+3}"]
    a(f"v_max_f32_dpp v{MX}, v{ML+1}, v{ML+1} row_half_mirror {DPPF}")
    a(ups[0]); a(ups[1])
    a(f"v_max_f32_dpp v{MX}, v{MX}, v{MX} quad_perm:[1,0,3,2] {DPPF}")
    a(ups[2]); a(ups[3])
    a(f"v_max_f32_dpp v{MX}, v{MX}, v{MX} quad_perm:[2,3,0,1] {DPPF}")
    a(f"v_sub_f32 v{F}, v{ML+1}, v{MX}\nv_mul_f32 v{F}, {sL2E}, v{F}\nv_exp_f32 v{F}, v{F}")
    a(ups[4]); a(ups[5]); a(ups[6]); a(ups[7])
    a(f"v_mul_f32 v{FL}, v{F}, v{ML}")
    E = T0
    lch = [f"v_add_f32_dpp v{FL}, v{FL}, v{FL} row_half_mirror {DPPF}", f"v_add_f32_dpp v{FL}, v{FL}, v{FL} quad_perm:[1,0,3,2] {DPPF}",
           f"v_add_f32_dpp v{FL}, v{FL}, v{FL} quad_perm:[2,3,0,1] {DPPF}", f"v_rcp_f32 v{FL}, v{FL}"]
    for i in range(4):
        for r in range(4):
            a(f"v_{'mul' if i == 0 else 'fmac'}_f32_dpp v{E+r}, v{F}, v{AT+4*i+r} row_newbcast:{i} {DPPF}")
        a(lch[i])
    a(f"""v_permlane32_swap_b32 v{E}, v{E+2}
    v_permlane32_swap_b32 v{E+1}, v{E+3}
    v_pk_add_f32 v[{E}:{E+1}], v[{E}:{E+1}], v[{E+2}:{E+3}]
    v_mul_f32 v{E}, v{E}, v{FL}
    v_mul_f32 v{E+1}, v{E+1}, v{FL}
    v_cvt_pk_bf16_f32 v{E}, v{E}, v{E+1}
    ds_write_b32 v{aVW}, v{E}""")
    for c in range(4): a(f"ds_read_b128 {vr(AT+4*c)}, v{aVR} offset:{64*c}")
    for c in range(4):
        a(f"s_waitcnt lgkmcnt({0 if stamps else 3-c})")
        for cg in range(2):
            d = T0 + 4*cg
            a(f"v_mfma_f32_16x16x32_bf16 {vr(d)}, {vr(FR+8*c+4*cg)}, {vr(AT+4*c)}, {'0' if c == 0 else vr(d)}")
    a(f"""s_mov_b32 exec_lo, 0x00010001
    s_mov_b32 exec_hi, 0x00010001
    ds_write_b128 v{aYW}, {vr(T0)} offset:{YRED}
    ds_write_b128 v{aYW}, {vr(T0+4)} offset:{YRED+64}
    s_cmp_lg_u32 {sW}, 0
    s_waitcnt lgkmcnt(0)
    s_mov_b64 exec, 0xff
    s_barrier
    s_cbranch_scc1 L_DONE""")
    for k in range(4): a(f"ds_read_b128 {vr(AT+4*k)}, v{aRD8} offset:{YRED+128*k}")
    a(f"""s_waitcnt lgkmcnt(0)
    v_pk_add_f32 v[{AT}:{AT+1}], v[{AT}:{AT+1}], v[{AT+4}:{AT+5}]
    v_pk_add_f32 v[{AT+2}:{AT+3}], v[{AT+2}:{AT+3}], v[{AT+6}:{AT+7}]
    v_pk_add_f32 v[{AT+8}:{AT+9}], v[{AT+8}:{AT+9}], v[{AT+12}:{AT+13}]
    v_pk_add_f32 v[{AT+10}:{AT+11}], v[{AT+10}:{AT+11}], v[{AT+14}:{AT+15}]
    v_pk_add_f32 v[{AT}:{AT+1}], v[{AT}:{AT+1}], v[{AT+8}:{AT+9}]
    v_pk_add_f32 v[{AT+2}:{AT+3}], v[{AT+2}:{AT+3}], v[{AT+10}:{AT+11}]""")
    pack(ST, AT, AT+1, AT+2, AT+3)
    a(f"global_store_dwordx4 v{aYS}, {vr(ST)}, {WS} sc1")
    stamp(10)
    a("s_branch L_DONE")

    aY, aHW, XH = 221, 224, 92
    def hsetup():
        a(f"""s_mul_i32 s33, {sW}, 320
        v_lshl_add_u32 v{aHW}, v{L}, 3, s33
        s_mov_b32 exec_hi, 0xff
        global_load_dwordx2 v[{XH+4}:{XH+5}], v{aHW}, {X}
        s_mov_b32 exec_hi, -1
        v_lshlrev_b32 v{aY}, 1, v{aHW}
        v_add_u32 v{aY}, {YP+2560}, v{aY}
        v_add_u32 v{aY+1}, {3*2560}, v{aY}
        v_add_u32 v{aY+2}, {6*2560}, v{aY}""")
    def xunpack():
        a(f"""v_lshlrev_b32 v{XH}, 16, v{XH+4}
        v_and_b32 v{XH+1}, 0xffff0000, v{XH+4}
        v_lshlrev_b32 v{XH+2}, 16, v{XH+5}
        v_and_b32 v{XH+3}, 0xffff0000, v{XH+5}""")
    def hgather(tag, st):
        a(f"s_mov_b32 exec_hi, 0xff\nL_YPOLL{tag}:")
        for g in range(8):
            a(f"global_load_dwordx4 {vr(AT+4*g)}, v{aY+g//3}, {WS} offset:{(g%3-1)*2560} sc1")
        a(f"""s_sub_u32 {sCNT}, {sCNT}, 1
        s_cbranch_scc1 L_YOK{tag}""")
        for g in range(8):
            a(f"s_waitcnt vmcnt({7-g})")
            check(ACC, AT+4*g, g == 0)
            unpack(AT+4*g)
            if g:
                a(f"v_pk_add_f32 v[{AT}:{AT+1}], v[{AT}:{AT+1}], v[{AT+4*g}:{AT+4*g+1}]")
                a(f"v_pk_add_f32 v[{AT+2}:{AT+3}], v[{AT+2}:{AT+3}], v[{AT+4*g+2}:{AT+4*g+3}]")
        a(f"""v_cmp_ne_u32 vcc, 0, v{ACC}
        s_cbranch_vccnz L_YPOLL{tag}
L_YOK{tag}:""")
        stamp(st)
        a(f"""v_cvt_pk_bf16_f32 v{AT+4}, v{AT}, v{AT+1}
        v_cvt_pk_bf16_f32 v{AT+5}, v{AT+2}, v{AT+3}
        v_lshlrev_b32 v{AT}, 16, v{AT+4}
        v_and_b32 v{AT+1}, 0xffff0000, v{AT+4}
        v_lshlrev_b32 v{AT+2}, 16, v{AT+5}
        v_and_b32 v{AT+3}, 0xffff0000, v{AT+5}
        v_pk_add_f32 v[{AT}:{AT+1}], v[{AT}:{AT+1}], v[{XH}:{XH+1}]
        v_pk_add_f32 v[{AT+2}:{AT+3}], v[{AT+2}:{AT+3}], v[{XH+2}:{XH+3}]
        v_cvt_pk_bf16_f32 v{AT}, v{AT}, v{AT+1}
        v_cvt_pk_bf16_f32 v{AT+1}, v{AT+2}, v{AT+3}
        ds_write_b64 v{aHW}, v[{AT}:{AT+1}] offset:{HVEC}""")

    a("L_MLP:")
    hsetup()
    aT2, aHR, aXW, aXR2, aPS, CS, MG = 225, 226, 227, 228, 229, 230, 231
    a(f"""s_mul_i32 s34, {sIDX}, {32*1280}
    s_add_u32 s34, s34, s33
    s_add_u32 m0, s32, {WB2}
    s_movk_i32 s35, 3277
    s_movk_i32 s36, 960
    v_lshl_add_u32 v{T0+2}, v{L}, 4, s34
    v_mul_u32_u24 v{T0+3}, s35, v{L}""")
    for u in range(10):
        a(f"""v_lshrrev_b32 v{T0+4}, 16, v{T0+3}
        v_mad_u32_u24 v{T0+5+(u&1)}, v{T0+4}, s36, v{T0+2}
        global_load_lds_dwordx4 v{T0+5+(u&1)}, {W2} nt""")
        if u < 9:
            a(f"""s_add_u32 m0, m0, 1024
            v_add_u32 v{T0+2}, 1024, v{T0+2}
            v_add_u32 v{T0+3}, {64*3277}, v{T0+3}""")
    a(f"""s_movk_i32 s35, 320
    s_add_u32 s36, s32, {WB2}
    v_mul_u32_u24 v{aT2}, s35, v{T0}
    v_add3_u32 v{aT2}, v{aT2}, v{T0+1}, s36
    v_add_u32 v{aHR}, s33, v{aFR}
    v_and_b32 v{T0}, 31, v{L}
    s_lshl_b32 s35, {sW}, 2
    v_lshl_add_u32 v{aXW}, v{T0}, 4, s35
    v_and_b32 v{T0}, 7, v{L}
    v_lshl_add_u32 v{T0}, v{S}, 3, v{T0}
    v_lshlrev_b32 v{aXR2}, 4, v{T0}
    s_mul_i32 s35, {sIDX}, 2560
    s_mul_i32 s36, {sW}, 640
    s_add_u32 s35, s35, s36
    s_add_u32 s35, s35, {PP}
    v_lshl_add_u32 v{aPS}, v{L}, 4, s35
    v_lshrrev_b32 v{T0}, 2, v{N}""")
    for G_ in range(3):
        a(f"v_cmp_eq_u32 vcc, {G_}, v{T0}\nv_cndmask_b32 v{MG+G_}, 0, -1, vcc")
    for r in range(4): a(f"v_mov_b32 v{AT+r}, 0x3f803f80")
    a("s_waitcnt vmcnt(10)")
    for c in range(5):
        for cg in range(2):
            for hh in range(2):
                b = FR + 8*c + 4*cg + 2*hh
                a(f"ds_read_b64_tr_b16 v[{b}:{b+1}], v{aT} offset:{c*2048 + hh*256 + cg*32}")
    xunpack()
    a("s_waitcnt lgkmcnt(0)")
    for c in range(5):
        for cg in range(2):
            d = T0 + 4*cg
            a(f"v_mfma_f32_16x16x32_bf16 {vr(d)}, {vr(AT)}, {vr(FR+8*c+4*cg)}, {'0' if c == 0 else vr(d)}")
    a(f"""v_cndmask_b32 v{T0}, v{T0}, v{T0+4}, {sODD}
    ds_write_b32 v{aXW}, v{T0} offset:{CSRED}
    s_waitcnt lgkmcnt(0)
    s_barrier
    ds_read_b128 {vr(T0)}, v{aXR2} offset:{CSRED}
    s_waitcnt vmcnt(0)""")
    F2 = FR + 40
    for i in range(10):
        for hh in range(2):
            b = F2 + 4*i + 2*hh
            a(f"ds_read_b64_tr_b16 v[{b}:{b+1}], v{aT2} offset:{hh*1280 + i*32}")
    S1, S2 = 24, 25
    a(f"""v_mov_b32 v{S1}, 0
    v_mov_b32 v{S2}, 0
    s_lshl_b32 s35, {sW}, 2
    v_mov_b32 v{TT}, s35
    v_mov_b32 v{LS}, 0
    s_waitcnt lgkmcnt(0)
    v_pk_add_f32 v[{T0}:{T0+1}], v[{T0}:{T0+1}], v[{T0+2}:{T0+3}]
    v_add_f32 v{CS}, v{T0}, v{T0+1}""")
    stamp(8)
    hgather("M", 9)
    HA = KD
    a(f"""v_lshlrev_b32 v{AT+4}, 16, v{AT}
    v_and_b32 v{AT+5}, 0xffff0000, v{AT}
    v_lshlrev_b32 v{AT+6}, 16, v{AT+1}
    v_and_b32 v{AT+7}, 0xffff0000, v{AT+1}
    v_pk_mul_f32 v[{AT+8}:{AT+9}], v[{AT+4}:{AT+5}], v[{AT+4}:{AT+5}]
    v_pk_add_f32 v[{AT+4}:{AT+5}], v[{AT+4}:{AT+5}], v[{AT+6}:{AT+7}]
    v_pk_fma_f32 v[{AT+8}:{AT+9}], v[{AT+6}:{AT+7}], v[{AT+6}:{AT+7}], v[{AT+8}:{AT+9}]
    v_add_f32 v{S1}, v{AT+4}, v{AT+5}
    v_add_f32 v{S2}, v{AT+8}, v{AT+9}
    s_mov_b32 exec_hi, -1""")
    for c in range(5): a(f"ds_read_b128 {vr(HA+4*c)}, v{aHR} offset:{HVEC+64*c}")
    for r in (8, 4, 2, 1):
        a(f"v_add_f32_dpp v{S1}, v{S1}, v{S1} row_ror:{r} {DPPF}\nv_add_f32_dpp v{S2}, v{S2}, v{S2} row_ror:{r} {DPPF}")
    a(f"""v_permlane16_swap_b32 v{S1}, v{S2}
    v_add_f32 v{S1}, v{S1}, v{S2}
    v_mov_b32 v{S2}, v{S1}
    v_permlane32_swap_b32 v{S1}, v{S2}
    v_add_f32 v{S1}, v{S1}, v{S2}
    v_add_u32 v{TT}, v{TT}, v{aFR}""")
    for c in range(5):
        a(f"s_waitcnt lgkmcnt({0 if stamps else 4-c})")
        for cg in range(2):
            d = T0 + 4*cg
            a(f"v_mfma_f32_16x16x32_bf16 {vr(d)}, {vr(HA+4*c)}, {vr(FR+8*c+4*cg)}, {'0' if c == 0 else vr(d)}")
    a(f"""s_mov_b64 exec, 0x10001
    ds_write_b32 v{TT}, v{S1} offset:{STAT}
    s_mov_b32 exec_lo, -1
    v_cndmask_b32 v{T0}, v{T0}, v{T0+4}, {sODD}
    ds_write_b32 v{aXW}, v{T0} offset:{HRED}
    s_mov_b64 exec, -1
    s_waitcnt lgkmcnt(0)
    s_barrier
    ds_read_b128 {vr(AT)}, v{LS} offset:{STAT}
    ds_read_b128 {vr(AT+4)}, v{LS} offset:{STAT+16}
    ds_read_b128 {vr(AT+8)}, v{aXR2} offset:{HRED}
    s_waitcnt lgkmcnt({0 if stamps else 1})
    v_pk_add_f32 v[{AT}:{AT+1}], v[{AT}:{AT+1}], v[{AT+2}:{AT+3}]
    v_pk_add_f32 v[{AT+4}:{AT+5}], v[{AT+4}:{AT+5}], v[{AT+6}:{AT+7}]
    v_add_f32 v{AT}, v{AT}, v{AT+1}
    v_add_f32 v{AT+4}, v{AT+4}, v{AT+5}
    v_mul_f32 v{AT}, {f2u(1/640)}, v{AT}
    v_mul_f32 v{AT+4}, {f2u(1/640)}, v{AT+4}
    v_fma_f32 v{AT+4}, -v{AT}, v{AT}, v{AT+4}
    v_max_f32 v{AT+4}, 0, v{AT+4}
    v_cvt_pk_bf16_f32 v{AT}, v{AT}, v{AT+4}
    v_and_b32 v{AT+4}, 0xffff0000, v{AT}
    v_lshlrev_b32 v{AT}, 16, v{AT}
    v_add_f32 v{AT+4}, {f2u(1e-5)}, v{AT+4}""")
    bf(AT+4)
    a(f"""v_sqrt_f32 v{AT+4}, v{AT+4}
    s_waitcnt lgkmcnt(0)
    v_pk_add_f32 v[{AT+8}:{AT+9}], v[{AT+8}:{AT+9}], v[{AT+10}:{AT+11}]""")
    bf(AT+4)
    a(f"""v_rcp_f32 v{AT+4}, v{AT+4}
    v_add_f32 v{AT+8}, v{AT+8}, v{AT+9}
    v_fma_f32 v{AT+8}, -v{AT}, v{CS}, v{AT+8}
    v_max_f32 v{AT+8}, 0, v{AT+8}
    v_mul_f32 v{AT+8}, v{AT+8}, v{AT+4}
    v_mov_b32_dpp v{AT+9}, v{AT+8} quad_perm:[1,1,3,3] {DPPF}
    v_cvt_pk_bf16_f32 v{PK}, v{AT+8}, v{AT+9}""")
    A2 = AT + 12; D2 = KD
    def mk(G_):
        for r in range(4): a(f"v_and_b32_dpp v{A2+4*G_+r}, v{PK}, v{MG+G_} row_newbcast:{2*r} {DPPF}")
    mk(0); mk(1)
    for i in range(10):
        G_ = i // 4; d = D2 + 4*(i % 4)
        a(f"v_mfma_f32_16x16x32_bf16 {vr(d)}, {vr(A2+4*G_)}, {vr(F2+4*i)}, {'0' if G_ == 0 else vr(d)}")
        if i == 1: mk(2)
    a(f"""v_mov_b32_dpp v{D2+8}, v{D2} row_ror:8 row_mask:0x4 bank_mask:0xf
    v_mov_b32_dpp v{D2+12}, v{D2+4} row_ror:8 row_mask:0x4 bank_mask:0xf
    s_mov_b32 exec_hi, 0xff""")
    pack(ST, D2, D2+4, D2+8, D2+12)
    a(f"global_store_dwordx4 v{aPS}, {vr(ST)}, {WS} sc1")
    stamp(10)
    a("s_branch L_DONE")

    a("L_FIN:")
    hsetup()
    aP, aC, HV = 225, 227, 228
    a(f"""s_lshl_b32 s34, {sIDX}, 3
    s_lshl_b32 s35, {sW}, 1
    s_add_u32 s34, s34, s35
    v_and_b32 v{T0}, 1, v{L}
    v_add_u32 v{T0}, s34, v{T0}                        ; GI
    v_lshrrev_b32 v{T0+1}, 1, v{L}
    s_movk_i32 s35, 2560
    v_mul_u32_u24 v{aP}, s35, v{T0+1}
    v_lshl_add_u32 v{aP}, v{T0}, 4, v{aP}
    v_add_u32 v{aP}, {PP}, v{aP}
    v_add_u32 v{aP+1}, {32*2560}, v{aP}
    v_mul_u32_u24 v{T0+1}, 205, v{T0}
    v_lshrrev_b32 v{T0+1}, 13, v{T0+1}                 ; wp
    v_mul_u32_u24 v{T0+2}, 40, v{T0+1}
    v_sub_u32 v{T0}, v{T0}, v{T0+2}                    ; lane'
    v_lshlrev_b32 v{T0+1}, 2, v{T0+2}                  ; 160*wp
    v_and_b32 v{T0+2}, 1, v{S}                         ; r>>1
    v_lshrrev_b32 v{T0+3}, 1, v{S}                     ; r&1
    v_lshl_add_u32 v{T0+1}, v{T0+3}, 4, v{T0+1}
    v_and_b32 v{T0+4}, 15, v{T0}
    v_add_u32 v{T0+1}, v{T0+4}, v{T0+1}
    v_lshrrev_b32 v{T0+4}, 4, v{T0}
    v_lshl_add_u32 v{T0+1}, v{T0+4}, 6, v{T0+1}
    v_cmp_gt_u32 vcc, 32, v{T0}
    v_cndmask_b32 v{T0+4}, 8, 32, vcc
    v_mad_u32_u24 v{T0+1}, v{T0+2}, v{T0+4}, v{T0+1}   ; col
    v_lshlrev_b32 v{aC}, 1, v{T0+1}
    s_waitcnt vmcnt(0)""")
    xunpack()
    hgather("F", 8)
    a(f"""s_mov_b32 exec_hi, -1
    s_waitcnt lgkmcnt(0)
    s_barrier
    ds_read_u16 v{HV}, v{aC} offset:{HVEC}
    v_mov_b32 v{AT+4}, 0
    v_mov_b32 v{AT+5}, 0
    v_mov_b32 v{AT+6}, 0
    v_mov_b32 v{AT+7}, {sTAG}
    s_movk_i32 {sCNT}, {spin-1}
    s_waitcnt lgkmcnt(0)
    v_lshlrev_b32 v{HV}, 16, v{HV}
L_PPOLL:
    global_load_dwordx4 {vr(AT)}, v{aP}, {WS} sc1
    s_mov_b32 exec_hi, 0xfff
    global_load_dwordx4 {vr(AT+4)}, v{aP+1}, {WS} sc1
    s_mov_b32 exec_hi, -1
    s_sub_u32 {sCNT}, {sCNT}, 1
    s_cbranch_scc1 L_POK
    s_waitcnt vmcnt(0)""")
    check(ACC, AT, True); check(ACC, AT+4, False)
    a(f"""v_cmp_ne_u32 vcc, 0, v{ACC}
    s_cbranch_vccnz L_PPOLL
L_POK:""")
    stamp(9)
    unpack(AT); unpack(AT+4)
    a(f"""v_pk_add_f32 v[{AT}:{AT+1}], v[{AT}:{AT+1}], v[{AT+4}:{AT+5}]
    v_pk_add_f32 v[{AT+2}:{AT+3}], v[{AT+2}:{AT+3}], v[{AT+6}:{AT+7}]
    v_permlane32_swap_b32 v{AT}, v{AT+1}
    v_permlane32_swap_b32 v{AT+2}, v{AT+3}
    v_add_f32 v{AT}, v{AT}, v{AT+1}
    v_add_f32 v{AT+2}, v{AT+2}, v{AT+3}
    v_permlane16_swap_b32 v{AT}, v{AT+2}
    v_add_f32 v{AT}, v{AT}, v{AT+2}""")
    for r in (8, 4, 2): a(f"v_add_f32_dpp v{AT}, v{AT}, v{AT} row_ror:{r} {DPPF}")
    bf(AT)
    a(f"""s_mov_b32 exec_lo, 0x00030003
    s_mov_b32 exec_hi, 0x00030003
    v_add_f32 v{AT}, v{AT}, v{HV}
    v_cvt_pk_bf16_f32 v{AT}, v{AT}, v{AT}
    global_store_short v{aC}, v{AT}, {OUT}
    s_or_b32 s32, {sIDX}, {sW}
    s_cmp_lg_u32 s32, 0""")
    stamp(10)
    a(f"""s_cbranch_scc1 L_DONE
    s_mov_b64 exec, 1
    v_mov_b32 v{T0}, 0
    global_store_dword v{T0}, v{ST+3}, {WS} sc1""")
    a("L_DONE:")
    if stamps:
        a(f"""s_waitcnt vmcnt(0)
        s_memrealtime s[{60+2*11}:{61+2*11}]
        s_cmp_lg_u32 {sW}, 0
        s_cbranch_scc1 L_END
        s_mov_b64 exec, 1
        s_mul_i32 s32, s2, {12*8}
        s_add_u32 s32, s32, 0x8000000
        v_mov_b32 v{T0}, s32
        s_waitcnt lgkmcnt(0)""")
        for k in range(12):
            a(f"v_mov_b32 v{T0+2}, s{60+2*k}\nv_mov_b32 v{T0+3}, s{61+2*k}\nglobal_store_dwordx2 v{T0}, v[{T0+2}:{T0+3}], {WS} offset:{8*k}")
    a("L_END:\ns_endpgm")
    lines = haz.pad(a.lines)
    return wrap("\n".join(lines) + "\n", 256, 256, LDSSZ, 256)

if __name__ == "__main__":
    open("k_dbg.s", "w").write(gen(stamps=True))
    open("k_rel.s", "w").write(gen(stamps=False))
```

```python
import sys, struct
from asmlib import Asm, wrap, NAME
import haz

def f2u(x): return struct.unpack("<I", struct.pack("<f", x))[0]
QP, OP, YP, PP = 0x10000, 0x40000, 0x70000, 0x80000
QRED, QVEC, MBUF, OBUF, OVEC, YRED, HVEC, HRED, CSRED, STAT = 0x0, 0x800, 0x900, 0xA00, 0x1300, 0x1700, 0x1900, 0x1E00, 0x2000, 0x2200
WB1 = 0x2400; WB2 = WB1 + 40960; LDSSZ = WB2 + 40960
X, K, V, WQ, WO, W1, W2, OUT, DBG, WS = "s[4:5]", "s[6:7]", "s[8:9]", "s[10:11]", "s[12:13]", "s[16:17]", "s[18:19]", "s[20:21]", "s[22:23]", "s[24:25]"
sW, sTAG, sG, sI, sH, sJ = "s26", "s27", "s28", "s29", "s30", "s31"
sPA, sPB, sPC, sUN = "s40", "s41", "s42", "s43"
sODD, sHI = "s[44:45]", "s[46:47]"
sCNT, sIDX, sROLE, sL2E, sSCL = "s48", "s49", "s50", "s51", "s52"
sSTA, sSTB = "s53", "s56"
sRB = "s[54:55]"; sEXA, sEXB = "s[58:59]", "s[90:91]"
sEXO = "s[92:93]"
DPPF = "row_mask:0xf bank_mask:0xf"
def vr(b, n=4): return f"v[{b}:{b+n-1}]"

def gen(nva=4, nvb=2, waitk=0, stamps=True, spin=0x8000, o=None):
    o = o or {}
    a = Asm()
    nst = [0]
    def stamp(k):
        if stamps:
            a(f"s_memrealtime s[{60+2*k}:{61+2*k}]")
    def allred(v, t, op="add", rows4=True):
        for r in (8, 4, 2, 1):
            a(f"v_{op}_f32_dpp v{v}, v{v}, v{v} row_ror:{r} {DPPF}")
        a(f"v_mov_b32 v{t}, v{v}\nv_permlane16_swap_b32 v{v}, v{t}\nv_{op}_f32 v{v}, v{v}, v{t}")
        if rows4:
            a(f"v_mov_b32 v{t}, v{v}\nv_permlane32_swap_b32 v{v}, v{t}\nv_{op}_f32 v{v}, v{v}, v{t}")
    def pack(dst, d0, d1, d2, d3):
        a(f"v_perm_b32 v{dst}, v{d0}, v{d3}, {sPA}\nv_perm_b32 v{dst+1}, v{d1}, v{d3}, {sPB}\nv_perm_b32 v{dst+2}, v{d2}, v{d3}, {sPC}")
    def check(acc, g, first):
        if first: a(f"v_xor_b32 v{acc}, {sTAG}, v{g+3}")
        else: a(f"v_bitop3_b32 v{acc}, v{acc}, v{g+3}, {sTAG} bitop3:0xf6")
    def unpack(g):
        a(f"v_perm_b32 v{g+3}, v{g+1}, v{g}, {sUN}\nv_lshl_or_b32 v{g+3}, v{g+2}, 24, v{g+3}")
    def bf(v, t=None):
        a(f"v_cvt_pk_bf16_f32 v{v}, v{v}, v{v}\nv_and_b32 v{v}, 0xffff0000, v{v}")

    L, N, S = 1, 3, 4
    WQD, KD, VD = 8, 28, 60
    XD, XR, XU = 92, 98, 100
    MK = 104
    AT = 108
    FR = 140
    aXA, aXB, aXR, aXU, aWQ, aK, aV = 220, 221, 222, 223, 224, 229, 230
    aRED, aRD8, aQS, aQG, aQW, aFR, aOW, aORD, aOS, aRA = 231, 232, 233, 234, 235, 236, 237, 238, 239, 240
    ST = 244
    T0 = 248
    ACC = 5

    a(f"""s_load_dwordx16 s[4:19], s[0:1], 0
    s_load_dwordx4 s[20:23], s[0:1], 64
    s_load_dwordx2 s[24:25], s[0:1], 80
    s_cmp_ge_u32 s2, 0x100
    s_cbranch_scc1 L_END""")
    if stamps:
        for k in range(1, 15): a(f"s_mov_b64 s[{60+2*k}:{61+2*k}], 0")
    stamp(0)
    a(f"""v_lshrrev_b32 v2, 6, v0
    v_and_b32 v{L}, 63, v0
    s_and_b32 {sG}, s2, 7
    v_readfirstlane_b32 {sW}, v2
    s_lshr_b32 {sI}, s2, 3
    s_and_b32 {sH}, {sI}, 3
    s_lshl_b32 s32, {sG}, 2
    s_add_u32 {sH}, {sH}, s32
    s_lshr_b32 {sJ}, {sI}, 2
    v_and_b32 v{N}, 15, v0
    v_bfe_u32 v{S}, v0, 4, 2
    s_mul_i32 s33, {sJ}, 80
    s_mul_i32 s34, {sW}, 20
    s_add_u32 s33, s33, s34
    s_lshl_b32 s35, s33, 1
    s_lshl_b32 s36, s33, 13
    s_lshl_b32 s34, {sH}, 8
    s_add_u32 s36, s36, s34
    v_lshlrev_b32 v{aXA}, 4, v{L}
    v_lshlrev_b32 v{aXB}, 2, v{L}
    v_lshl_add_u32 v{aXR}, v{S}, 3, s35
    v_lshl_add_u32 v{aXU}, v{S}, 1, s35
    v_lshl_add_u32 v{T0}, v{N}, 4, s36
    v_lshl_add_u32 v{aWQ}, v{S}, 15, v{T0}
    v_add_u32 v{aWQ+1}, 0x2000, v{aWQ}
    v_add_u32 v{aWQ+2}, 0x4000, v{aWQ}
    v_add_u32 v{aWQ+3}, 0x6000, v{aWQ}
    v_lshl_add_u32 v{aWQ+4}, v{S}, 13, v{T0}
    v_add_u32 v{aWQ+4}, 0x20000, v{aWQ+4}
    s_lshl_b32 s37, {sH}, 20
    s_lshl_b32 s34, {sJ}, 15
    s_add_u32 s37, s37, s34
    s_lshl_b32 s34, {sW}, 13
    s_add_u32 s37, s37, s34
    s_add_u32 s37, s37, {3072*256}
    s_add_u32 s38, s37, 4096
    v_lshl_add_u32 v{aK}, v{N}, 8, s38
    v_lshl_add_u32 v{aK}, v{S}, 4, v{aK}
    v_and_b32 v{T0}, 1, v{S}
    v_lshrrev_b32 v{T0+1}, 1, v{S}
    v_lshl_add_u32 v{aV}, v{N}, 4, s37
    v_lshl_add_u32 v{aV}, v{T0}, 12, v{aV}
    v_lshl_add_u32 v{aV}, v{T0+1}, 11, v{aV}
    s_waitcnt lgkmcnt(0)
    global_load_dwordx4 {vr(XD)}, v{aXA}, {X}
    global_load_dword v{XD+4}, v{aXB}, {X} offset:1024
    global_load_dwordx2 {vr(XR,2)}, v{aXR}, {X}
    global_load_ushort v{XU}, v{aXU}, {X} offset:32""")
    for t in range(5):
        a(f"global_load_dwordx4 {vr(WQD+4*t)}, v{aWQ+t}, {WQ} nt")
    for T in range(2):
        for c in range(4):
            a(f"global_load_dwordx4 {vr(KD+16*T+4*c)}, v{aK}, {K} offset:{(T-1)*4096+64*c} nt")
    a(f"s_load_dword {sTAG}, {WS}, 0")
    stamp(1)
    a(f"""s_mov_b32 {sPA}, 0x07060501
    s_mov_b32 {sPB}, 0x07060502
    s_mov_b32 {sPC}, 0x07060503
    s_mov_b32 {sUN}, 0x0c04000c
    s_mov_b32 s44, 0xffff0000
    s_mov_b32 s45, 0xffff0000
    s_mov_b32 s46, 0
    s_mov_b32 s47, -1
    s_mov_b32 {sL2E}, {f2u(1.4426950408889634)}
    s_mov_b32 {sSCL}, {f2u(128 ** -0.5)}""")
    a(f"""v_and_b32 v{T0}, 1, v{N}
    v_lshlrev_b32 v{T0}, 4, v{T0}
    v_mov_b32 v{T0+1}, 0xffff
    v_lshlrev_b32 v{T0}, v{T0}, v{T0+1}
    v_lshrrev_b32 v{T0+1}, 1, v{N}""")
    for r in range(4):
        a(f"v_cmp_eq_u32 vcc, {r}, v{T0+1}\nv_cndmask_b32 v{MK+r}, 0, v{T0}, vcc")
    a(f"""s_lshl_b32 s32, {sW}, 9
    v_lshl_add_u32 v{aRED}, v{N}, 5, s32
    v_lshl_add_u32 v{aRED}, v{S}, 4, v{aRED}
    s_lshl_b32 s32, {sW}, 7
    v_lshl_add_u32 v{aRD8}, v{L}, 4, s32              ; w*128 + l*16 (lanes<8)
    s_lshl_b32 s33, {sH}, 3
    s_add_u32 s33, s33, {sJ}                           ; head*8+j
    s_lshl_b32 s34, s33, 9
    s_add_u32 s34, s34, {QP}
    v_add_u32 v{aQS}, s34, v{aRD8}
    s_lshl_b32 s34, {sH}, 12
    s_add_u32 s34, s34, {QP}
    s_add_u32 s34, s34, s32
    v_lshrrev_b32 v{T0}, 3, v{L}
    v_and_b32 v{T0+1}, 7, v{L}
    v_lshl_add_u32 v{aQG}, v{T0}, 9, s34
    v_lshl_add_u32 v{aQG}, v{T0+1}, 4, v{aQG}
    s_lshl_b32 s34, {sW}, 6
    s_add_u32 s34, s34, {QVEC}
    v_lshl_add_u32 v{aQW}, v{T0+1}, 3, s34
    v_and_b32 v{T0}, 1, v{S}
    v_lshl_add_u32 v{aQW}, v{T0}, 2, v{aQW}
    v_and_b32 v{T0}, 2, v{S}
    v_add_u32 v{aQW}, v{T0}, v{aQW}
    v_lshlrev_b32 v{aFR}, 4, v{S}                      ; 16*s
    s_mul_i32 s34, {sW}, 528
    s_add_u32 s34, s34, {OBUF}
    v_lshl_add_u32 v{aOW}, v{N}, 5, s34
    v_lshl_add_u32 v{aOW}, v{S}, 4, v{aOW}
    s_add_u32 s34, s34, 512
    v_mov_b32 v{T0}, s34
    v_cndmask_b32 v{aOW}, v{aOW}, v{T0}, {sHI}
    v_mov_b32 v{T0}, 512
    v_cmp_gt_u32 vcc, 8, v{L}
    v_cndmask_b32 v{aORD}, v{T0}, v{aRD8}, vcc
    v_lshl_add_u32 v{T0}, v{L}, 4, v{T0}
    v_subrev_u32 v{T0}, 128, v{T0}                     ; 512 + (l-8)*16
    v_cndmask_b32 v{aOS}, v{T0}, v{aRD8}, vcc
    s_mul_i32 s34, s33, 640
    s_add_u32 s34, s34, {OP}
    v_add_u32 v{aOS}, s34, v{aOS}
    s_movk_i32 s92, 0xff
    s_cmp_eq_u32 {sW}, 0
    s_cselect_b32 s92, 0xffff, s92
    s_mov_b32 s93, 0""")
    a(f"""s_mov_b32 {sROLE}, 0
    s_mov_b32 {sIDX}, {sI}
    s_mov_b64 {sRB}, {WO}
    s_mov_b64 {sEXA}, -1
    s_mov_b64 {sEXB}, 1
    s_mov_b32 {sSTA}, {16*1280}
    s_mov_b32 {sSTB}, 0
    s_mov_b32 s32, 1280
    s_lshl_b32 s33, {sG}, 2
    s_add_u32 s33, s33, {sW}
    s_mul_i32 s33, s33, {128*1280}
    s_lshl_b32 s34, {sI}, 6
    s_add_u32 s33, s33, s34
    s_cmp_lt_u32 {sI}, 20
    s_cbranch_scc1 L_ROLE_DONE
    s_sub_u32 s34, {sI}, 20
    s_lshr_b32 s35, s34, 1
    s_lshl_b32 s35, s35, 3
    s_add_u32 s35, s35, {sG}
    s_cmp_lt_u32 s35, 27
    s_cbranch_scc0 L_ROLE_NOTMLP
    s_and_b32 s34, s34, 1
    s_lshl_b32 s35, s35, 1
    s_add_u32 {sIDX}, s35, s34
    s_mov_b32 {sROLE}, 1
    s_mov_b64 {sRB}, {W1}
    s_mov_b64 {sEXB}, -1
    s_mov_b32 {sSTA}, {16*3456}
    s_mov_b32 {sSTB}, {16*3456}
    s_mov_b32 s32, 3456
    s_mul_i32 s33, {sW}, {160*3456}
    s_lshl_b32 s34, {sIDX}, 6
    s_add_u32 s33, s33, s34
    s_branch L_ROLE_DONE
L_ROLE_NOTMLP:
    s_mov_b64 {sEXA}, 1
    s_mov_b32 {sSTA}, 0
    s_mov_b32 s33, 0
    s_mov_b32 {sROLE}, 3
    s_cmp_lt_u32 {sI}, 28
    s_cbranch_scc1 L_ROLE_DONE
    s_sub_u32 s34, {sI}, 28
    s_lshl_b32 s34, s34, 3
    s_add_u32 {sIDX}, s34, {sG}
    s_cmp_lt_u32 {sIDX}, 20
    s_cselect_b32 {sROLE}, 2, 3
L_ROLE_DONE:
    v_lshrrev_b32 v{T0}, 2, v{L}
    v_mul_u32_u24 v{aRA}, s32, v{T0}
    v_and_b32 v{T0}, 3, v{L}
    v_lshl_add_u32 v{aRA}, v{T0}, 4, v{aRA}
    v_add_u32 v{aRA}, s33, v{aRA}""")
    U = AT
    a("s_waitcnt vmcnt(15)")
    for k in range(5):
        a(f"v_lshlrev_b32 v{U+2*k}, 16, v{XD+k}\nv_and_b32 v{U+2*k+1}, 0xffff0000, v{XD+k}")
    a(f"""v_pk_add_f32 v[{T0}:{T0+1}], v[{U}:{U+1}], v[{U+2}:{U+3}]
    v_pk_add_f32 v[{T0+2}:{T0+3}], v[{U+4}:{U+5}], v[{U+6}:{U+7}]
    v_pk_add_f32 v[{T0}:{T0+1}], v[{T0}:{T0+1}], v[{U+8}:{U+9}]
    v_pk_add_f32 v[{T0}:{T0+1}], v[{T0}:{T0+1}], v[{T0+2}:{T0+3}]
    v_add_f32 v{T0}, v{T0}, v{T0+1}""")
    allred(T0, T0+1)
    a(f"v_mul_f32 v{T0}, {f2u(1/640)}, v{T0}")
    for k in range(10):
        a(f"v_sub_f32 v{U+k}, v{U+k}, v{T0}")
    a(f"v_mul_f32 v{T0+2}, v{U}, v{U}\nv_mul_f32 v{T0+3}, v{U+1}, v{U+1}")
    for k in range(2, 10):
        a(f"v_fmac_f32 v{T0+2+(k&1)}, v{U+k}, v{U+k}")
    a(f"v_add_f32 v{T0+2}, v{T0+2}, v{T0+3}")
    allred(T0+2, T0+3)
    a(f"v_mul_f32 v{T0+2}, {f2u(1/640)}, v{T0+2}")
    bf(T0); bf(T0+2)
    a(f"v_add_f32 v{T0+2}, {f2u(1e-5)}, v{T0+2}")
    bf(T0+2)
    a(f"v_sqrt_f32 v{T0+2}, v{T0+2}")
    bf(T0+2)
    a(f"v_rcp_f32 v{T0+2}, v{T0+2}")
    a("s_waitcnt vmcnt(13)")
    Y = AT + 20
    a(f"""v_lshlrev_b32 v{Y}, 16, v{XR}
    v_and_b32 v{Y+1}, 0xffff0000, v{XR}
    v_lshlrev_b32 v{Y+2}, 16, v{XR+1}
    v_and_b32 v{Y+3}, 0xffff0000, v{XR+1}
    v_lshlrev_b32 v{Y+4}, 16, v{XU}""")
    for t in range(5): a(f"v_sub_f32 v{Y+t}, v{Y+t}, v{T0}")
    for t in range(5): bf(Y+t)
    for t in range(5): a(f"v_mul_f32 v{Y+t}, v{Y+t}, v{T0+2}")
    for t in range(5): a(f"v_cvt_pk_bf16_f32 v{Y+t}, v{Y+t}, v{Y+t}")
    for t in range(5):
        for r in range(4): a(f"v_and_b32 v{AT+4*t+r}, v{Y+t}, v{MK+r}")
    stamp(2)
    D = AT + 28
    for t in range(5):
        a(f"s_waitcnt vmcnt({12-t})")
        a(f"v_mfma_f32_16x16x32_bf16 {vr(D)}, {vr(AT+4*t)}, {vr(WQD+4*t)}, {'0' if t == 0 else vr(D)}")
    def vload(u): a(f"global_load_dwordx4 {vr(VD+4*u)}, v{aV}, {V} offset:{256*u} nt")
    for u in range(nva): vload(u)
    a(f"""s_mov_b32 exec_hi, 0
    ds_write_b128 v{aRED}, {vr(D)} offset:{QRED}
    s_waitcnt lgkmcnt(0)
    s_add_u32 {sTAG}, {sTAG}, 0x01010101
    s_mov_b64 exec, -1
    v_mov_b32 v{ST+3}, {sTAG}
    s_mov_b64 exec, 0xff
    s_barrier""")
    for k in range(4): a(f"ds_read_b128 {vr(AT+4*k)}, v{aRD8} offset:{QRED+512*k}")
    a(f"""s_waitcnt lgkmcnt(0)
    v_pk_add_f32 v[{AT}:{AT+1}], v[{AT}:{AT+1}], v[{AT+4}:{AT+5}]
    v_pk_add_f32 v[{AT+2}:{AT+3}], v[{AT+2}:{AT+3}], v[{AT+6}:{AT+7}]
    v_pk_add_f32 v[{AT+8}:{AT+9}], v[{AT+8}:{AT+9}], v[{AT+12}:{AT+13}]
    v_pk_add_f32 v[{AT+10}:{AT+11}], v[{AT+10}:{AT+11}], v[{AT+14}:{AT+15}]
    v_pk_add_f32 v[{AT}:{AT+1}], v[{AT}:{AT+1}], v[{AT+8}:{AT+9}]
    v_pk_add_f32 v[{AT+2}:{AT+3}], v[{AT+2}:{AT+3}], v[{AT+10}:{AT+11}]""")
    pack(ST, AT, AT+1, AT+2, AT+3)
    a(f"global_store_dwordx4 v{aQS}, {vr(ST)}, {WS} sc1\ns_mov_b64 exec, -1")
    stamp(3)
    for u in range(nva, nva + nvb): vload(u)
    nrest = 8 - nva - nvb
    a(f"s_waitcnt vmcnt({nva + 1 + nvb + waitk})")
    stamp(4)
    G = AT
    a(f"global_load_dwordx4 {vr(G)}, v{aQG}, {WS} sc1")
    for u in range(nva + nvb, 8): vload(u)
    a(f"""s_mul_i32 s32, {sW}, 10240
    s_add_u32 m0, s32, {WB1}
    s_mov_b64 exec, {sEXA}""")
    for u in range(10):
        if u == 8: a(f"s_mov_b64 exec, {sEXB}")
        a(f"global_load_lds_dwordx4 v{aRA}, {sRB} nt")
        if u < 9:
            a(f"s_add_u32 m0, m0, 1024\ns_add_u32 s54, s54, {sSTA if u < 7 else sSTB}\ns_addc_u32 s55, s55, 0")
    a(f"""s_mov_b64 exec, -1
    s_movk_i32 {sCNT}, {spin-1}
    s_waitcnt vmcnt({nrest + 10})
    v_cmp_ne_u32 vcc, {sTAG}, v{G+3}
    s_cbranch_vccz L_QOK
L_QPOLL:
    global_load_dwordx4 {vr(G)}, v{aQG}, {WS} sc1
    s_sub_u32 {sCNT}, {sCNT}, 1
    s_cbranch_scc1 L_QOK
    s_waitcnt vmcnt(0)
    v_cmp_ne_u32 vcc, {sTAG}, v{G+3}
    s_cbranch_vccnz L_QPOLL
L_QOK:""")
    stamp(5)
    unpack(G)
    a(f"""v_permlane32_swap_b32 v{G}, v{G+1}
    v_permlane32_swap_b32 v{G+2}, v{G+3}
    v_add_f32 v{G}, v{G}, v{G+1}
    v_add_f32 v{G+2}, v{G+2}, v{G+3}
    v_permlane16_swap_b32 v{G}, v{G+2}
    v_add_f32 v{G}, v{G}, v{G+2}
    v_add_f32_dpp v{G}, v{G}, v{G} row_ror:8 {DPPF}
    v_cvt_pk_bf16_f32 v{G}, v{G}, v{G}
    ds_write_b16 v{aQW}, v{G}
    s_waitcnt lgkmcnt(0)
    s_barrier""")
    Q = WQD
    for c in range(4): a(f"ds_read_b128 {vr(Q+4*c)}, v{aFR} offset:{QVEC+64*c}")
    if waitk: a(f"s_waitcnt vmcnt({nrest + 10})")
    D0, D1 = T0, T0 + 4
    for c in range(4):
        a(f"s_waitcnt lgkmcnt({0 if stamps else 3-c})")
        a(f"v_mfma_f32_16x16x32_bf16 {vr(D0)}, {vr(Q+4*c)}, {vr(KD+4*c)}, {'0' if c == 0 else vr(D0)}")
        a(f"v_mfma_f32_16x16x32_bf16 {vr(D1)}, {vr(Q+4*c)}, {vr(KD+16+4*c)}, {'0' if c == 0 else vr(D1)}")
    SC, SR, MX, PK, LS, TT = 24, 25, 26, 27, 6, 7
    a(f"v_cndmask_b32 v{SC}, v{D0}, v{D1}, {sODD}")
    bf(SC)
    a(f"v_mul_f32 v{SC}, {sSCL}, v{SC}")
    bf(SC)
    a(f"""v_mov_b32 v{SR}, v{SC}
    v_max_f32_dpp v{MX}, v{SC}, v{SC} row_ror:8 {DPPF}
    v_mov_b32_dpp v{SR}, v{SC} row_ror:8 row_mask:0xc bank_mask:0xf""")
    for r in (4, 2, 1): a(f"v_max_f32_dpp v{MX}, v{MX}, v{MX} row_ror:{r} {DPPF}")
    a(f"""v_mov_b32 v{TT}, v{MX}
    v_permlane16_swap_b32 v{MX}, v{TT}
    v_max_f32 v{MX}, v{MX}, v{TT}
    v_sub_f32 v{SR}, v{SR}, v{MX}
    v_mul_f32 v{SR}, {sL2E}, v{SR}
    v_exp_f32 v{SR}, v{SR}
    s_lshl_b32 s32, {sW}, 2
    v_mov_b32 v{TT}, s32
    v_cvt_pk_bf16_f32 v{PK}, v{SR}, v{SR}
    s_mov_b64 exec, 1
    ds_write_b32 v{TT}, v{MX} offset:{MBUF}
    s_mov_b64 exec, -1
    v_and_b32 v{LS}, 0xffff0000, v{PK}""")
    lsum = [f"v_add_f32_dpp v{LS}, v{LS}, v{LS} row_ror:{r} {DPPF}" for r in (8, 4, 2, 1)] + [f"v_mov_b32 v{TT}, v{LS}", f"v_permlane16_swap_b32 v{LS}, v{TT}", f"v_add_f32 v{LS}, v{LS}, v{TT}"]
    for u in range(8):
        for r in range(4): a(f"v_and_b32_dpp v{AT+4*u+r}, v{PK}, v{MK+r} row_newbcast:{u} {DPPF}")
        if u < len(lsum): a(lsum[u])
    stamp(6)
    DO = T0
    for u in range(8):
        if u >= nva + nvb: a(f"s_waitcnt vmcnt({7 - u + 10})")
        a(f"v_mfma_f32_16x16x32_bf16 {vr(DO)}, {vr(AT+4*u)}, {vr(VD+4*u)}, {'0' if u == 0 else vr(DO)}")
    a(f"""s_mov_b32 exec_hi, 1
    v_cndmask_b32 v{DO}, v{DO}, v{LS}, {sHI}
    ds_write_b128 v{aOW}, {vr(DO)}
    v_mov_b32 v{TT}, 0
    s_waitcnt lgkmcnt(0)
    s_mov_b64 exec, {sEXO}
    s_barrier
    ds_read_b128 {vr(AT+16)}, v{TT} offset:{MBUF}""")
    for k in range(4): a(f"ds_read_b128 {vr(AT+4*k)}, v{aORD} offset:{OBUF+528*k}")
    M4 = AT + 16
    a(f"""s_waitcnt lgkmcnt({0 if stamps else 4})
    v_max3_f32 v{MX}, v{M4}, v{M4+1}, v{M4+2}
    v_max_f32 v{MX}, v{MX}, v{M4+3}""")
    for k in range(4): a(f"v_sub_f32 v{M4+k}, v{M4+k}, v{MX}")
    for k in range(4): a(f"v_mul_f32 v{M4+k}, {sL2E}, v{M4+k}")
    for k in range(4): a(f"v_exp_f32 v{M4+k}, v{M4+k}")
    a(f"""v_cmp_lt_u32 vcc, 7, v{L}
    s_waitcnt lgkmcnt(0)
    v_pk_mul_f32 v[{AT}:{AT+1}], v[{AT}:{AT+1}], v[{M4}:{M4+1}] op_sel_hi:[1,0]
    v_pk_mul_f32 v[{AT+2}:{AT+3}], v[{AT+2}:{AT+3}], v[{M4}:{M4+1}] op_sel_hi:[1,0]
    v_pk_fma_f32 v[{AT}:{AT+1}], v[{AT+4}:{AT+5}], v[{M4}:{M4+1}], v[{AT}:{AT+1}] op_sel:[0,1,0]
    v_pk_fma_f32 v[{AT+2}:{AT+3}], v[{AT+6}:{AT+7}], v[{M4}:{M4+1}], v[{AT+2}:{AT+3}] op_sel:[0,1,0]
    v_pk_fma_f32 v[{AT}:{AT+1}], v[{AT+8}:{AT+9}], v[{M4+2}:{M4+3}], v[{AT}:{AT+1}] op_sel_hi:[1,0,1]
    v_pk_fma_f32 v[{AT+2}:{AT+3}], v[{AT+10}:{AT+11}], v[{M4+2}:{M4+3}], v[{AT+2}:{AT+3}] op_sel_hi:[1,0,1]
    v_pk_fma_f32 v[{AT}:{AT+1}], v[{AT+12}:{AT+13}], v[{M4+2}:{M4+3}], v[{AT}:{AT+1}] op_sel:[0,1,0]
    v_pk_fma_f32 v[{AT+2}:{AT+3}], v[{AT+14}:{AT+15}], v[{M4+2}:{M4+3}], v[{AT+2}:{AT+3}] op_sel:[0,1,0]
    v_cndmask_b32 v{AT+1}, v{AT+1}, v{MX}, vcc""")
    pack(ST, AT, AT+1, AT+2, AT+3)
    a(f"global_store_dwordx4 v{aOS}, {vr(ST)}, {WS} sc1\ns_mov_b64 exec, -1")
    stamp(7)
    aT = aXA
    a(f"""v_bfe_u32 v{T0}, v{L}, 2, 2
    v_lshl_add_u32 v{T0}, v{S}, 3, v{T0}               ; 8s + r
    v_and_b32 v{T0+1}, 3, v{L}
    v_lshlrev_b32 v{T0+1}, 3, v{T0+1}                  ; cc*8
    s_mul_i32 s32, {sW}, 10240
    s_add_u32 s33, s32, {WB1}
    v_lshl_add_u32 v{aT}, v{T0}, 6, s33
    v_add_u32 v{aT}, v{T0+1}, v{aT}
    s_movk_i32 {sCNT}, {spin-1}
    s_cmp_eq_u32 {sROLE}, 1
    s_cbranch_scc1 L_MLP
    s_cmp_eq_u32 {sROLE}, 2
    s_cbranch_scc1 L_FIN
    s_cmp_eq_u32 {sROLE}, 3
    s_cbranch_scc1 L_DONE""")
    aPO, aPM, aVW, aVR, aYW, aYS = 221, 222, 223, 224, 225, 226
    a(f"""s_lshl_b32 s32, {sG}, 2
    s_add_u32 s32, s32, {sW}
    s_mul_i32 s32, s32, {8*640}
    s_add_u32 s32, s32, {OP}
    v_lshrrev_b32 v{T0}, 5, v{L}                       ; hf
    v_and_b32 v{T0+1}, 31, v{L}                        ; gq
    s_movk_i32 s33, 2560
    v_mul_u32_u24 v{aPO}, s33, v{T0}
    v_lshl_add_u32 v{aPO}, v{T0+1}, 4, v{aPO}
    v_add_u32 v{aPO}, s32, v{aPO}
    v_and_b32 v{T0+2}, 7, v{L}
    v_lshlrev_b32 v{T0+3}, 2, v{T0}
    v_xor_b32 v{T0+2}, v{T0+2}, v{T0+3}
    s_movk_i32 s33, 640
    v_mul_u32_u24 v{aPM}, s33, v{T0+2}
    v_add_u32 v{aPM}, s32, v{aPM}
    s_lshl_b32 s33, {sW}, 8
    s_add_u32 s33, s33, {OVEC}
    v_lshl_add_u32 v{aVW}, v{T0+1}, 3, s33
    v_add_u32 v{aVW}, v{T0+3}, v{aVW}
    v_add_u32 v{aVR}, s33, v{aFR}
    s_lshl_b32 s33, {sW}, 7
    v_add_u32 v{aYW}, s33, v{aFR}
    s_mul_i32 s33, {sG}, 2560
    s_lshl_b32 s34, {sIDX}, 7
    s_add_u32 s33, s33, s34
    s_add_u32 s33, s33, {YP}
    v_lshlrev_b32 v{aRD8}, 4, v{L}
    v_add_u32 v{aYS}, s33, v{aRD8}
    s_waitcnt vmcnt(1)""")
    for c in range(4):
        for cg in range(2):
            for hh in range(2):
                b = FR + 8*c + 4*cg + 2*hh
                a(f"ds_read_b64_tr_b16 v[{b}:{b+1}], v{aT} offset:{c*2048 + hh*256 + cg*32}")
    a("s_waitcnt lgkmcnt(0)")
    stamp(8)
    ML = AT + 16
    a("L_OPOLL:")
    a(f"global_load_dwordx4 {vr(ML)}, v{aPM}, {WS} offset:512 sc1")
    for i in range(4): a(f"global_load_dwordx4 {vr(AT+4*i)}, v{aPO}, {WS} offset:{640*i} sc1")
    a(f"""s_sub_u32 {sCNT}, {sCNT}, 1
    s_cbranch_scc1 L_OOK
    s_waitcnt vmcnt(0)""")
    check(ACC, ML, True)
    for i in range(4): check(ACC, AT+4*i, False)
    a(f"""v_cmp_ne_u32 vcc, 0, v{ACC}
    s_cbranch_vccnz L_OPOLL
L_OOK:""")
    stamp(9)
    F, FL = 24, 25
    ups = []
    for i in range(4):
        g = AT + 4*i
        ups += [f"v_perm_b32 v{g+3}, v{g+1}, v{g}, {sUN}", f"v_lshl_or_b32 v{g+3}, v{g+2}, 24, v{g+3}"]
    a(f"v_max_f32_dpp v{MX}, v{ML+1}, v{ML+1} row_half_mirror {DPPF}")
    a(ups[0]); a(ups[1])
    a(f"v_max_f32_dpp v{MX}, v{MX}, v{MX} quad_perm:[1,0,3,2] {DPPF}")
    a(ups[2]); a(ups[3])
    a(f"v_max_f32_dpp v{MX}, v{MX}, v{MX} quad_perm:[2,3,0,1] {DPPF}")
    a(f"v_sub_f32 v{F}, v{ML+1}, v{MX}\nv_mul_f32 v{F}, {sL2E}, v{F}\nv_exp_f32 v{F}, v{F}")
    a(ups[4]); a(ups[5]); a(ups[6]); a(ups[7])
    a(f"v_mul_f32 v{FL}, v{F}, v{ML}")
    E = T0
    lch = [f"v_add_f32_dpp v{FL}, v{FL}, v{FL} row_half_mirror {DPPF}", f"v_add_f32_dpp v{FL}, v{FL}, v{FL} quad_perm:[1,0,3,2] {DPPF}",
           f"v_add_f32_dpp v{FL}, v{FL}, v{FL} quad_perm:[2,3,0,1] {DPPF}", f"v_rcp_f32 v{FL}, v{FL}"]
    for i in range(4):
        for r in range(4):
            a(f"v_{'mul' if i == 0 else 'fmac'}_f32_dpp v{E+r}, v{F}, v{AT+4*i+r} row_newbcast:{i} {DPPF}")
        a(lch[i])
    a(f"""v_permlane32_swap_b32 v{E}, v{E+2}
    v_permlane32_swap_b32 v{E+1}, v{E+3}
    v_pk_add_f32 v[{E}:{E+1}], v[{E}:{E+1}], v[{E+2}:{E+3}]
    v_mul_f32 v{E}, v{E}, v{FL}
    v_mul_f32 v{E+1}, v{E+1}, v{FL}
    v_cvt_pk_bf16_f32 v{E}, v{E}, v{E+1}
    ds_write_b32 v{aVW}, v{E}""")
    for c in range(4): a(f"ds_read_b128 {vr(AT+4*c)}, v{aVR} offset:{64*c}")
    for c in range(4):
        a(f"s_waitcnt lgkmcnt({0 if stamps else 3-c})")
        for cg in range(2):
            d = T0 + 4*cg
            a(f"v_mfma_f32_16x16x32_bf16 {vr(d)}, {vr(FR+8*c+4*cg)}, {vr(AT+4*c)}, {'0' if c == 0 else vr(d)}")
    a(f"""s_mov_b32 exec_lo, 0x00010001
    s_mov_b32 exec_hi, 0x00010001
    ds_write_b128 v{aYW}, {vr(T0)} offset:{YRED}
    ds_write_b128 v{aYW}, {vr(T0+4)} offset:{YRED+64}
    s_cmp_lg_u32 {sW}, 0
    s_waitcnt lgkmcnt(0)
    s_mov_b64 exec, 0xff
    s_barrier
    s_cbranch_scc1 L_DONE""")
    for k in range(4): a(f"ds_read_b128 {vr(AT+4*k)}, v{aRD8} offset:{YRED+128*k}")
    a(f"""s_waitcnt lgkmcnt(0)
    v_pk_add_f32 v[{AT}:{AT+1}], v[{AT}:{AT+1}], v[{AT+4}:{AT+5}]
    v_pk_add_f32 v[{AT+2}:{AT+3}], v[{AT+2}:{AT+3}], v[{AT+6}:{AT+7}]
    v_pk_add_f32 v[{AT+8}:{AT+9}], v[{AT+8}:{AT+9}], v[{AT+12}:{AT+13}]
    v_pk_add_f32 v[{AT+10}:{AT+11}], v[{AT+10}:{AT+11}], v[{AT+14}:{AT+15}]
    v_pk_add_f32 v[{AT}:{AT+1}], v[{AT}:{AT+1}], v[{AT+8}:{AT+9}]
    v_pk_add_f32 v[{AT+2}:{AT+3}], v[{AT+2}:{AT+3}], v[{AT+10}:{AT+11}]""")
    pack(ST, AT, AT+1, AT+2, AT+3)
    a(f"global_store_dwordx4 v{aYS}, {vr(ST)}, {WS} sc1")
    stamp(10)
    a("s_branch L_DONE")

    aY, aHW, XH = 221, 224, 92
    def hsetup():
        a(f"""s_mul_i32 s33, {sW}, 320
        v_lshl_add_u32 v{aHW}, v{L}, 3, s33
        s_mov_b32 exec_hi, 0xff
        global_load_dwordx2 v[{XH+4}:{XH+5}], v{aHW}, {X}
        s_mov_b32 exec_hi, -1
        v_lshlrev_b32 v{aY}, 1, v{aHW}
        v_add_u32 v{aY}, {YP+2560}, v{aY}
        v_add_u32 v{aY+1}, {3*2560}, v{aY}
        v_add_u32 v{aY+2}, {6*2560}, v{aY}""")
    def xunpack():
        a(f"""v_lshlrev_b32 v{XH}, 16, v{XH+4}
        v_and_b32 v{XH+1}, 0xffff0000, v{XH+4}
        v_lshlrev_b32 v{XH+2}, 16, v{XH+5}
        v_and_b32 v{XH+3}, 0xffff0000, v{XH+5}""")
    def hgather(tag, st):
        a(f"s_mov_b32 exec_hi, 0xff\nL_YPOLL{tag}:")
        for g in range(8):
            a(f"global_load_dwordx4 {vr(AT+4*g)}, v{aY+g//3}, {WS} offset:{(g%3-1)*2560} sc1")
        a(f"""s_sub_u32 {sCNT}, {sCNT}, 1
        s_cbranch_scc1 L_YOK{tag}""")
        for g in range(8):
            a(f"s_waitcnt vmcnt({7-g})")
            check(ACC, AT+4*g, g == 0)
            unpack(AT+4*g)
            if g:
                a(f"v_pk_add_f32 v[{AT}:{AT+1}], v[{AT}:{AT+1}], v[{AT+4*g}:{AT+4*g+1}]")
                a(f"v_pk_add_f32 v[{AT+2}:{AT+3}], v[{AT+2}:{AT+3}], v[{AT+4*g+2}:{AT+4*g+3}]")
        a(f"""v_cmp_ne_u32 vcc, 0, v{ACC}
        s_cbranch_vccnz L_YPOLL{tag}
L_YOK{tag}:""")
        stamp(st)
        a(f"""v_cvt_pk_bf16_f32 v{AT+4}, v{AT}, v{AT+1}
        v_cvt_pk_bf16_f32 v{AT+5}, v{AT+2}, v{AT+3}
        v_lshlrev_b32 v{AT}, 16, v{AT+4}
        v_and_b32 v{AT+1}, 0xffff0000, v{AT+4}
        v_lshlrev_b32 v{AT+2}, 16, v{AT+5}
        v_and_b32 v{AT+3}, 0xffff0000, v{AT+5}
        v_pk_add_f32 v[{AT}:{AT+1}], v[{AT}:{AT+1}], v[{XH}:{XH+1}]
        v_pk_add_f32 v[{AT+2}:{AT+3}], v[{AT+2}:{AT+3}], v[{XH+2}:{XH+3}]
        v_cvt_pk_bf16_f32 v{AT}, v{AT}, v{AT+1}
        v_cvt_pk_bf16_f32 v{AT+1}, v{AT+2}, v{AT+3}
        ds_write_b64 v{aHW}, v[{AT}:{AT+1}] offset:{HVEC}""")

    a("L_MLP:")
    hsetup()
    aT2, aHR, aXW, aXR2, aPS, CS, MG = 225, 226, 227, 228, 229, 230, 231
    a(f"""s_mul_i32 s34, {sIDX}, {32*1280}
    s_add_u32 s34, s34, s33
    s_add_u32 m0, s32, {WB2}
    s_movk_i32 s35, 3277
    s_movk_i32 s36, 960
    v_lshl_add_u32 v{T0+2}, v{L}, 4, s34
    v_mul_u32_u24 v{T0+3}, s35, v{L}""")
    for u in range(10):
        a(f"""v_lshrrev_b32 v{T0+4}, 16, v{T0+3}
        v_mad_u32_u24 v{T0+5+(u&1)}, v{T0+4}, s36, v{T0+2}
        global_load_lds_dwordx4 v{T0+5+(u&1)}, {W2} nt""")
        if u < 9:
            a(f"""s_add_u32 m0, m0, 1024
            v_add_u32 v{T0+2}, 1024, v{T0+2}
            v_add_u32 v{T0+3}, {64*3277}, v{T0+3}""")
    a(f"""s_movk_i32 s35, 320
    s_add_u32 s36, s32, {WB2}
    v_mul_u32_u24 v{aT2}, s35, v{T0}
    v_add3_u32 v{aT2}, v{aT2}, v{T0+1}, s36
    v_add_u32 v{aHR}, s33, v{aFR}
    v_and_b32 v{T0}, 31, v{L}
    s_lshl_b32 s35, {sW}, 2
    v_lshl_add_u32 v{aXW}, v{T0}, 4, s35
    v_and_b32 v{T0}, 7, v{L}
    v_lshl_add_u32 v{T0}, v{S}, 3, v{T0}
    v_lshlrev_b32 v{aXR2}, 4, v{T0}
    s_mul_i32 s35, {sIDX}, 2560
    s_mul_i32 s36, {sW}, 640
    s_add_u32 s35, s35, s36
    s_add_u32 s35, s35, {PP}
    v_lshl_add_u32 v{aPS}, v{L}, 4, s35
    v_lshrrev_b32 v{T0}, 2, v{N}""")
    for G_ in range(3):
        a(f"v_cmp_eq_u32 vcc, {G_}, v{T0}\nv_cndmask_b32 v{MG+G_}, 0, -1, vcc")
    for r in range(4): a(f"v_mov_b32 v{AT+r}, 0x3f803f80")
    a("s_waitcnt vmcnt(10)")
    for c in range(5):
        for cg in range(2):
            for hh in range(2):
                b = FR + 8*c + 4*cg + 2*hh
                a(f"ds_read_b64_tr_b16 v[{b}:{b+1}], v{aT} offset:{c*2048 + hh*256 + cg*32}")
    xunpack()
    a("s_waitcnt lgkmcnt(0)")
    for c in range(5):
        for cg in range(2):
            d = T0 + 4*cg
            a(f"v_mfma_f32_16x16x32_bf16 {vr(d)}, {vr(AT)}, {vr(FR+8*c+4*cg)}, {'0' if c == 0 else vr(d)}")
    a(f"""v_cndmask_b32 v{T0}, v{T0}, v{T0+4}, {sODD}
    ds_write_b32 v{aXW}, v{T0} offset:{CSRED}
    s_waitcnt lgkmcnt(0)
    s_barrier
    ds_read_b128 {vr(T0)}, v{aXR2} offset:{CSRED}
    s_waitcnt vmcnt(0)""")
    F2 = FR + 40
    for i in range(10):
        for hh in range(2):
            b = F2 + 4*i + 2*hh
            a(f"ds_read_b64_tr_b16 v[{b}:{b+1}], v{aT2} offset:{hh*1280 + i*32}")
    S1, S2 = 24, 25
    a(f"""v_mov_b32 v{S1}, 0
    v_mov_b32 v{S2}, 0
    s_lshl_b32 s35, {sW}, 2
    v_mov_b32 v{TT}, s35
    v_mov_b32 v{LS}, 0
    s_waitcnt lgkmcnt(0)
    v_pk_add_f32 v[{T0}:{T0+1}], v[{T0}:{T0+1}], v[{T0+2}:{T0+3}]
    v_add_f32 v{CS}, v{T0}, v{T0+1}""")
    stamp(8)
    hgather("M", 9)
    HA = KD
    a(f"""v_lshlrev_b32 v{AT+4}, 16, v{AT}
    v_and_b32 v{AT+5}, 0xffff0000, v{AT}
    v_lshlrev_b32 v{AT+6}, 16, v{AT+1}
    v_and_b32 v{AT+7}, 0xffff0000, v{AT+1}
    v_pk_mul_f32 v[{AT+8}:{AT+9}], v[{AT+4}:{AT+5}], v[{AT+4}:{AT+5}]
    v_pk_add_f32 v[{AT+4}:{AT+5}], v[{AT+4}:{AT+5}], v[{AT+6}:{AT+7}]
    v_pk_fma_f32 v[{AT+8}:{AT+9}], v[{AT+6}:{AT+7}], v[{AT+6}:{AT+7}], v[{AT+8}:{AT+9}]
    v_add_f32 v{S1}, v{AT+4}, v{AT+5}
    v_add_f32 v{S2}, v{AT+8}, v{AT+9}
    s_mov_b32 exec_hi, -1""")
    for c in range(5): a(f"ds_read_b128 {vr(HA+4*c)}, v{aHR} offset:{HVEC+64*c}")
    for r in (8, 4, 2, 1):
        a(f"v_add_f32_dpp v{S1}, v{S1}, v{S1} row_ror:{r} {DPPF}\nv_add_f32_dpp v{S2}, v{S2}, v{S2} row_ror:{r} {DPPF}")
    a(f"""v_permlane16_swap_b32 v{S1}, v{S2}
    v_add_f32 v{S1}, v{S1}, v{S2}
    v_mov_b32 v{S2}, v{S1}
    v_permlane32_swap_b32 v{S1}, v{S2}
    v_add_f32 v{S1}, v{S1}, v{S2}
    v_add_u32 v{TT}, v{TT}, v{aFR}""")
    for c in range(5):
        a(f"s_waitcnt lgkmcnt({0 if stamps else 4-c})")
        for cg in range(2):
            d = T0 + 4*cg
            a(f"v_mfma_f32_16x16x32_bf16 {vr(d)}, {vr(HA+4*c)}, {vr(FR+8*c+4*cg)}, {'0' if c == 0 else vr(d)}")
    a(f"""s_mov_b64 exec, 0x10001
    ds_write_b32 v{TT}, v{S1} offset:{STAT}
    s_mov_b32 exec_lo, -1
    v_cndmask_b32 v{T0}, v{T0}, v{T0+4}, {sODD}
    ds_write_b32 v{aXW}, v{T0} offset:{HRED}
    s_mov_b64 exec, -1
    s_waitcnt lgkmcnt(0)
    s_barrier
    ds_read_b128 {vr(AT)}, v{LS} offset:{STAT}
    ds_read_b128 {vr(AT+4)}, v{LS} offset:{STAT+16}
    ds_read_b128 {vr(AT+8)}, v{aXR2} offset:{HRED}
    s_waitcnt lgkmcnt({0 if stamps else 1})
    v_pk_add_f32 v[{AT}:{AT+1}], v[{AT}:{AT+1}], v[{AT+2}:{AT+3}]
    v_pk_add_f32 v[{AT+4}:{AT+5}], v[{AT+4}:{AT+5}], v[{AT+6}:{AT+7}]
    v_add_f32 v{AT}, v{AT}, v{AT+1}
    v_add_f32 v{AT+4}, v{AT+4}, v{AT+5}
    v_mul_f32 v{AT}, {f2u(1/640)}, v{AT}
    v_mul_f32 v{AT+4}, {f2u(1/640)}, v{AT+4}
    v_fma_f32 v{AT+4}, -v{AT}, v{AT}, v{AT+4}
    v_max_f32 v{AT+4}, 0, v{AT+4}
    v_cvt_pk_bf16_f32 v{AT}, v{AT}, v{AT+4}
    v_and_b32 v{AT+4}, 0xffff0000, v{AT}
    v_lshlrev_b32 v{AT}, 16, v{AT}
    v_add_f32 v{AT+4}, {f2u(1e-5)}, v{AT+4}""")
    bf(AT+4)
    a(f"""v_sqrt_f32 v{AT+4}, v{AT+4}
    s_waitcnt lgkmcnt(0)
    v_pk_add_f32 v[{AT+8}:{AT+9}], v[{AT+8}:{AT+9}], v[{AT+10}:{AT+11}]""")
    bf(AT+4)
    a(f"""v_rcp_f32 v{AT+4}, v{AT+4}
    v_add_f32 v{AT+8}, v{AT+8}, v{AT+9}
    v_fma_f32 v{AT+8}, -v{AT}, v{CS}, v{AT+8}
    v_max_f32 v{AT+8}, 0, v{AT+8}
    v_mul_f32 v{AT+8}, v{AT+8}, v{AT+4}
    v_mov_b32_dpp v{AT+9}, v{AT+8} quad_perm:[1,1,3,3] {DPPF}
    v_cvt_pk_bf16_f32 v{PK}, v{AT+8}, v{AT+9}""")
    A2 = AT + 12; D2 = KD
    def mk(G_):
        for r in range(4): a(f"v_and_b32_dpp v{A2+4*G_+r}, v{PK}, v{MG+G_} row_newbcast:{2*r} {DPPF}")
    mk(0); mk(1)
    for i in range(10):
        G_ = i // 4; d = D2 + 4*(i % 4)
        a(f"v_mfma_f32_16x16x32_bf16 {vr(d)}, {vr(A2+4*G_)}, {vr(F2+4*i)}, {'0' if G_ == 0 else vr(d)}")
        if i == 1: mk(2)
    a(f"""v_mov_b32_dpp v{D2+8}, v{D2} row_ror:8 row_mask:0x4 bank_mask:0xf
    v_mov_b32_dpp v{D2+12}, v{D2+4} row_ror:8 row_mask:0x4 bank_mask:0xf
    s_mov_b32 exec_hi, 0xff""")
    pack(ST, D2, D2+4, D2+8, D2+12)
    a(f"global_store_dwordx4 v{aPS}, {vr(ST)}, {WS} sc1")
    stamp(10)
    a("s_branch L_DONE")

    a("L_FIN:")
    hsetup()
    aP, aC, HV = 225, 227, 228
    a(f"""s_lshl_b32 s34, {sIDX}, 3
    s_lshl_b32 s35, {sW}, 1
    s_add_u32 s34, s34, s35
    v_and_b32 v{T0}, 1, v{L}
    v_add_u32 v{T0}, s34, v{T0}                        ; GI
    v_lshrrev_b32 v{T0+1}, 1, v{L}
    s_movk_i32 s35, 2560
    v_mul_u32_u24 v{aP}, s35, v{T0+1}
    v_lshl_add_u32 v{aP}, v{T0}, 4, v{aP}
    v_add_u32 v{aP}, {PP}, v{aP}
    v_add_u32 v{aP+1}, {32*2560}, v{aP}
    v_mul_u32_u24 v{T0+1}, 205, v{T0}
    v_lshrrev_b32 v{T0+1}, 13, v{T0+1}                 ; wp
    v_mul_u32_u24 v{T0+2}, 40, v{T0+1}
    v_sub_u32 v{T0}, v{T0}, v{T0+2}                    ; lane'
    v_lshlrev_b32 v{T0+1}, 2, v{T0+2}                  ; 160*wp
    v_and_b32 v{T0+2}, 1, v{S}                         ; r>>1
    v_lshrrev_b32 v{T0+3}, 1, v{S}                     ; r&1
    v_lshl_add_u32 v{T0+1}, v{T0+3}, 4, v{T0+1}
    v_and_b32 v{T0+4}, 15, v{T0}
    v_add_u32 v{T0+1}, v{T0+4}, v{T0+1}
    v_lshrrev_b32 v{T0+4}, 4, v{T0}
    v_lshl_add_u32 v{T0+1}, v{T0+4}, 6, v{T0+1}
    v_cmp_gt_u32 vcc, 32, v{T0}
    v_cndmask_b32 v{T0+4}, 8, 32, vcc
    v_mad_u32_u24 v{T0+1}, v{T0+2}, v{T0+4}, v{T0+1}   ; col
    v_lshlrev_b32 v{aC}, 1, v{T0+1}
    s_waitcnt vmcnt(0)""")
    xunpack()
    hgather("F", 8)
    a(f"""s_mov_b32 exec_hi, -1
    s_waitcnt lgkmcnt(0)
    s_barrier
    ds_read_u16 v{HV}, v{aC} offset:{HVEC}
    v_mov_b32 v{AT+4}, 0
    v_mov_b32 v{AT+5}, 0
    v_mov_b32 v{AT+6}, 0
    v_mov_b32 v{AT+7}, {sTAG}
    s_movk_i32 {sCNT}, {spin-1}
    s_waitcnt lgkmcnt(0)
    v_lshlrev_b32 v{HV}, 16, v{HV}
L_PPOLL:
    global_load_dwordx4 {vr(AT)}, v{aP}, {WS} sc1
    s_mov_b32 exec_hi, 0xfff
    global_load_dwordx4 {vr(AT+4)}, v{aP+1}, {WS} sc1
    s_mov_b32 exec_hi, -1
    s_sub_u32 {sCNT}, {sCNT}, 1
    s_cbranch_scc1 L_POK
    s_waitcnt vmcnt(0)""")
    check(ACC, AT, True); check(ACC, AT+4, False)
    a(f"""v_cmp_ne_u32 vcc, 0, v{ACC}
    s_cbranch_vccnz L_PPOLL
L_POK:""")
    stamp(9)
    unpack(AT); unpack(AT+4)
    a(f"""v_pk_add_f32 v[{AT}:{AT+1}], v[{AT}:{AT+1}], v[{AT+4}:{AT+5}]
    v_pk_add_f32 v[{AT+2}:{AT+3}], v[{AT+2}:{AT+3}], v[{AT+6}:{AT+7}]
    v_permlane32_swap_b32 v{AT}, v{AT+1}
    v_permlane32_swap_b32 v{AT+2}, v{AT+3}
    v_add_f32 v{AT}, v{AT}, v{AT+1}
    v_add_f32 v{AT+2}, v{AT+2}, v{AT+3}
    v_permlane16_swap_b32 v{AT}, v{AT+2}
    v_add_f32 v{AT}, v{AT}, v{AT+2}""")
    for r in (8, 4, 2): a(f"v_add_f32_dpp v{AT}, v{AT}, v{AT} row_ror:{r} {DPPF}")
    bf(AT)
    a(f"""s_mov_b32 exec_lo, 0x00030003
    s_mov_b32 exec_hi, 0x00030003
    v_add_f32 v{AT}, v{AT}, v{HV}
    v_cvt_pk_bf16_f32 v{AT}, v{AT}, v{AT}
    global_store_short v{aC}, v{AT}, {OUT}
    s_or_b32 s32, {sIDX}, {sW}
    s_cmp_lg_u32 s32, 0""")
    stamp(10)
    a(f"""s_cbranch_scc1 L_DONE
    s_mov_b64 exec, 1
    v_mov_b32 v{T0}, 0
    global_store_dword v{T0}, v{ST+3}, {WS} sc1""")
    a("L_DONE:")
    if stamps:
        a(f"""s_waitcnt vmcnt(0)
        s_memrealtime s[{60+2*11}:{61+2*11}]
        s_cmp_lg_u32 {sW}, 0
        s_cbranch_scc1 L_END
        s_mov_b64 exec, 1
        s_mul_i32 s32, s2, {12*8}
        s_add_u32 s32, s32, 0x8000000
        v_mov_b32 v{T0}, s32
        s_waitcnt lgkmcnt(0)""")
        if o.get("dbgst"):
            a(f"v_mov_b32 v{T0+4}, 0\nv_not_b32 v{T0+2}, s60\nglobal_atomic_umax v{T0+4}, v{T0+2}, {DBG}")
            for pos, k in ((1, 0), (2, 3), (3, 5), (4, 7), (14, 2), (15, 4)):
                a(f"v_mov_b32 v{T0+2}, s{60+2*k}\nglobal_atomic_umax v{T0+4}, v{T0+2}, {DBG} offset:{4*pos}")
            a(f"s_mul_i32 s32, {sROLE}, 12\nv_mov_b32 v{T0+4}, s32")
            for pos, k in ((5, 8), (6, 9), (7, 10)):
                a(f"v_mov_b32 v{T0+2}, s{60+2*k}\nglobal_atomic_umax v{T0+4}, v{T0+2}, {DBG} offset:{4*pos}")
        for k in range(12):
            a(f"v_mov_b32 v{T0+2}, s{60+2*k}\nv_mov_b32 v{T0+3}, s{61+2*k}\nglobal_store_dwordx2 v{T0}, v[{T0+2}:{T0+3}], {WS} offset:{8*k}")
    a("L_END:\ns_endpgm")
    lines = haz.pad(a.lines)
    return wrap("\n".join(lines) + "\n", 256, 256, LDSSZ, 256)

if __name__ == "__main__":
    open("k_dbg.s", "w").write(gen(stamps=True))
    open("k_rel.s", "w").write(gen(stamps=False))
    open("k_ds.s", "w").write(gen(stamps=True, o=dict(dbgst=1)))
```

```python
import sys, struct
from asmlib import Asm, wrap, NAME
import haz

def f2u(x): return struct.unpack("<I", struct.pack("<f", x))[0]
QP, OP, PP, YP, OPA = 0x10000, 0x40000, 0x80000, 0xB0000, 0x110000
YCS = 0x5000
QRED, QVEC, MBUF, OBUF, OVEC, YRED, HVEC, HRED, CSRED, STAT = 0x0, 0x800, 0x900, 0xA00, 0x1300, 0x1700, 0x1900, 0x1E00, 0x2000, 0x2200
QZ = 0x2400
WB1 = 0x3400; WB2 = WB1 + 40960; LDSSZ = WB2 + 40960
X, K, V, WQ, WO, W1, W2, OUT, DBG, WS = "s[4:5]", "s[6:7]", "s[8:9]", "s[10:11]", "s[12:13]", "s[16:17]", "s[18:19]", "s[20:21]", "s[22:23]", "s[24:25]"
sW, sTAG, sG, sI, sH, sJ = "s26", "s27", "s28", "s29", "s30", "s31"
sPA, sPB, sPC, sUN = "s40", "s41", "s42", "s43"
sODD, sHI = "s[44:45]", "s[46:47]"
sCNT, sIDX, sROLE, sL2E, sSCL = "s48", "s49", "s50", "s51", "s52"
sSTA, sSTB = "s53", "s56"
sRB = "s[54:55]"; sEXA, sEXB = "s[58:59]", "s[90:91]"
sEXO = "s[92:93]"
sST4, sST5, sM4, sM5, sONE = "s94", "s95", "s96", "s97", "s98"
WSA = "s[100:101]"
DPPF = "row_mask:0xf bank_mask:0xf"
def vr(b, n=4): return f"v[{b}:{b+n-1}]"

def gen(nvb=4, stamps=True, spin=0x8000, o=None):
    o = o or {}
    a = Asm()
    NT = {0: "", 1: " nt", 2: " sc1 nt", 3: " sc1"}[o.get("nt", 1)]
    vq = []
    def vm(tag, txt):
        a(txt); vq.append(tag)
    def vwait(tag):
        k = max(i for i, t in enumerate(vq) if t == tag)
        a(f"s_waitcnt vmcnt({len(vq) - 1 - k})")
    nst = [0]
    def stamp(k):
        if stamps:
            a(f"s_memrealtime s[{60+2*k}:{61+2*k}]")
    def allred(v, t, op="add", rows4=True):
        for r in (8, 4, 2, 1):
            a(f"v_{op}_f32_dpp v{v}, v{v}, v{v} row_ror:{r} {DPPF}")
        a(f"v_mov_b32 v{t}, v{v}\nv_permlane16_swap_b32 v{v}, v{t}\nv_{op}_f32 v{v}, v{v}, v{t}")
        if rows4:
            a(f"v_mov_b32 v{t}, v{v}\nv_permlane32_swap_b32 v{v}, v{t}\nv_{op}_f32 v{v}, v{v}, v{t}")
    def pack(dst, d0, d1, d2, d3):
        a(f"v_perm_b32 v{dst}, v{d0}, v{d3}, {sPA}\nv_perm_b32 v{dst+1}, v{d1}, v{d3}, {sPB}\nv_perm_b32 v{dst+2}, v{d2}, v{d3}, {sPC}")
    def check(acc, g, first):
        if first: a(f"v_xor_b32 v{acc}, {sTAG}, v{g+3}")
        else: a(f"v_bitop3_b32 v{acc}, v{acc}, v{g+3}, {sTAG} bitop3:0xf6")
    def unpack(g):
        a(f"v_perm_b32 v{g+3}, v{g+1}, v{g}, {sUN}\nv_lshl_or_b32 v{g+3}, v{g+2}, 24, v{g+3}")
    def bf(v, t=None):
        a(f"v_cvt_pk_bf16_f32 v{v}, v{v}, v{v}\nv_and_b32 v{v}, 0xffff0000, v{v}")

    L, N, S = 1, 3, 4
    WQD, KD, VD = 8, 28, 60
    XD, XR, XU = 92, 98, 100
    MK = 104
    AT = 108
    FR = 140
    aXA, aXB, aXR, aXU, aWQ, aK, aV = 220, 221, 222, 223, 224, 229, 230
    aRED, aRD8, aQS, aQG, aQW, aFR, aOW, aORD, aOS, aRA = 231, 232, 233, 234, 235, 236, 237, 238, 239, 240
    aQA = 241
    ST = 244
    T0 = 248
    ACC = 5

    R16 = 2
    stamp(0)
    a(f"""s_load_dwordx16 s[4:19], s[0:1], 0
    s_load_dwordx2 s[24:25], s[0:1], 80
    s_getpc_b64 s[34:35]
    s_lshl_b32 s32, s2, 6
    v_lshrrev_b32 v{T0+1}, 6, v0
    v_lshl_add_u32 v{T0}, v{T0+1}, 7, s32
    s_cmpk_ge_u32 s2, 0x100
    s_cbranch_scc1 L_END""")
    vm("pf", f"global_load_dword v{T0+7}, v{T0}, s[34:35]")
    qmap = o.get("qmap", 1); qfast = o.get("qfast", 1)
    if qmap: a(f"s_lshr_b32 s33, s2, 5\ns_and_b32 {sH}, s2, 31\ns_lshl_b32 s32, {sH}, 8")
    else: a(f"s_and_b32 s33, s2, 7\ns_lshr_b32 {sI}, s2, 3\ns_lshl_b32 s32, {sI}, 8")
    a(f"""s_mulk_i32 s33, 160
    s_lshl_b32 s36, s33, 12
    s_add_u32 s36, s36, s32
    v_lshrrev_b32 v{R16}, 4, v0
    v_and_b32 v{N}, 15, v0
    v_and_b32 v{L}, 63, v0
    v_lshlrev_b32 v{aXA}, 4, v{L}
    v_lshlrev_b32 v{aXB}, 2, v{L}
    v_lshl_add_u32 v{aXR}, v{R16}, 3, s33
    v_lshl_add_u32 v{aXU}, v{R16}, 1, s33
    v_lshl_add_u32 v{T0}, v{N}, 4, s36
    v_lshl_add_u32 v{aWQ}, v{R16}, 15, v{T0}
    s_movk_i32 s37, 0x2000
    v_add_u32 v{aWQ+1}, s37, v{aWQ}
    v_add_u32 v{aWQ+2}, s37, v{aWQ+1}
    v_add_u32 v{aWQ+3}, s37, v{aWQ+2}
    v_lshl_add_u32 v{aWQ+4}, v{R16}, 13, v{T0}
    v_add_u32 v{aWQ+4}, 0x80000, v{aWQ+4}
    s_waitcnt lgkmcnt(0)
    s_load_dword {sTAG}, {WS}, 0""")
    vm("x", f"global_load_dwordx4 {vr(XD)}, v{aXA}, {X}")
    vm("x", f"global_load_dword v{XD+4}, v{aXB}, {X} offset:1024")
    vm("xr", f"global_load_dwordx2 {vr(XR,2)}, v{aXR}, {X}")
    vm("xr", f"global_load_ushort v{XU}, v{aXU}, {X} offset:128")
    if o.get("xbar", 1): a("s_barrier")
    for t in range(5):
        vm(f"wq{t}", f"global_load_dwordx4 {vr(WQD+4*t)}, v{aWQ+t}, {WQ}{NT}")
    a(f"""s_lshr_b32 {sJ}, s2, 5
    v_readfirstlane_b32 {sW}, v{T0+1}
    s_and_b32 {sH}, s2, 31
    s_lshr_b32 {sI}, s2, 3
    v_and_b32 v{S}, 3, v{R16}
    s_lshl_b32 s37, {sH}, 20
    s_lshl_b32 s34, {sJ}, 15
    s_add_u32 s37, s37, s34
    s_lshl_b32 s34, {sW}, 13
    s_add_u32 s37, s37, s34
    s_add_u32 s37, s37, {3072*256 + 4096}
    v_lshrrev_b32 v{T0}, 2, v{N}
    v_and_b32 v{T0+1}, 3, v{N}
    v_lshl_add_u32 v{aK}, v{T0}, 8, s37
    v_lshl_add_u32 v{aK}, v{S}, 6, v{aK}
    v_lshl_add_u32 v{aK}, v{T0+1}, 4, v{aK}""")
    def kload(u):
        vm(f"k{u}", f"global_load_dwordx4 {vr(KD+4*u)}, v{aK}, {K} offset:{1024*u-4096}{NT}")
    def vload(u): vm(f"v{u}", f"global_load_dwordx4 {vr(VD+4*u)}, v{aV}, {V} offset:{((u&1)-1)*4096 + (u>>1)*256}{NT}")
    nk = [0]; nv = [0]
    avdone = [0]
    def seq(st):
        for ch in st:
            if ch == "k": kload(nk[0]); nk[0] += 1
            elif ch == "v":
                if not avdone[0]:
                    a(f"v_lshl_add_u32 v{aV}, v{N}, 4, s37\nv_lshl_add_u32 v{aV}, v{S}, 10, v{aV}"); avdone[0] = 1
                vload(nv[0]); nv[0] += 1
            elif ch == "t": vm("t", f"s_mov_b64 exec, 1\nglobal_load_dword v{FR+2}, v{aK}, {V}\ns_mov_b64 exec, -1")
    seq(o.get("pre", "kkk"))
    if not avdone[0]:
        a(f"v_lshl_add_u32 v{aV}, v{N}, 4, s37\nv_lshl_add_u32 v{aV}, v{S}, 10, v{aV}"); avdone[0] = 1
    stamp(1)
    if stamps:
        for k in range(2, 15): a(f"s_mov_b64 s[{60+2*k}:{61+2*k}], 0")
    a(f"""s_and_b32 {sG}, s2, 7
    v_mov_b32 v{AT}, 0
    v_mov_b32 v{AT+1}, 0
    v_mov_b32 v{AT+2}, 0
    v_mov_b32 v{AT+3}, 0
    v_lshlrev_b32 v{T0}, 4, v0
    ds_write_b128 v{T0}, {vr(AT)} offset:{QZ}
    s_mov_b32 {sONE}, 0x3f803f80
    s_add_u32 s100, s24, {OPA - OP}
    s_addc_u32 s101, s25, 0""")
    a(f"""s_mov_b32 {sPA}, 0x07060501
    s_mov_b32 {sPB}, 0x07060502
    s_mov_b32 {sPC}, 0x07060503
    s_mov_b32 {sUN}, 0x0c04000c
    s_mov_b32 s44, 0xffff0000
    s_mov_b32 s45, 0xffff0000
    s_mov_b32 s46, 0
    s_mov_b32 s47, -1
    s_mov_b32 {sL2E}, {f2u(1.4426950408889634)}
    s_mov_b32 {sSCL}, {f2u(128 ** -0.5)}""")
    a(f"""v_and_b32 v{T0}, 1, v{N}
    v_lshlrev_b32 v{T0}, 4, v{T0}
    v_mov_b32 v{T0+1}, 0xffff
    v_lshlrev_b32 v{T0}, v{T0}, v{T0+1}
    v_lshrrev_b32 v{T0+1}, 1, v{N}""")
    for r in range(4):
        a(f"v_cmp_eq_u32 vcc, {r}, v{T0+1}\nv_cndmask_b32 v{MK+r}, 0, v{T0}, vcc")
    a(f"""s_lshl_b32 s32, {sW}, 9
    v_lshl_add_u32 v{aRED}, v{N}, 5, s32
    v_lshl_add_u32 v{aRED}, v{S}, 4, v{aRED}
    s_lshl_b32 s32, {sW}, 7
    v_lshl_add_u32 v{aRD8}, v{L}, 4, s32              ; w*128 + l*16 (lanes<8)
    {f"s_lshl3_add_u32 s34, {sH}, {sJ}" if qmap else "s_mov_b32 s34, s2"}
    s_lshl_b32 s34, s34, 9
    s_add_u32 s34, s34, {QP}
    v_add_u32 v{aQS}, s34, v{aRD8}""")
    if qfast: vm("pw", f"s_mov_b64 exec, 1\nglobal_load_dword v{FR}, v{aQS}, {WSA} nt\ns_mov_b64 exec, -1")
    seq(o.get("pre1", ""))
    def late_setup():
        a(f"""s_lshl_b32 s32, {sW}, 7
    s_lshl_b32 s33, {sH}, 3
    s_add_u32 s33, s33, {sJ}
    s_lshl_b32 s34, {sH}, 12
    s_add_u32 s34, s34, {QP}
    s_add_u32 s34, s34, s32
    v_lshrrev_b32 v{T0}, 3, v{L}
    v_and_b32 v{T0+1}, 7, v{L}
    v_lshl_add_u32 v{aQG}, v{T0}, 9, s34
    v_lshl_add_u32 v{aQG}, v{T0+1}, 4, v{aQG}
    s_lshl_b32 s34, {sW}, 8
    s_add_u32 s34, s34, {QZ + 192}
    v_lshl_add_u32 v{aQW}, v{T0+1}, 3, s34
    v_and_b32 v{T0}, 1, v{S}
    v_lshl_add_u32 v{aQW}, v{T0}, 2, v{aQW}
    v_and_b32 v{T0}, 2, v{S}
    v_add_u32 v{aQW}, v{T0}, v{aQW}
    v_lshlrev_b32 v{aFR}, 4, v{S}                      ; 16*s
    v_lshlrev_b32 v{aQA}, 4, v{L}                      ; kg*256 + m*16
    s_mul_i32 s34, {sW}, 528
    s_add_u32 s34, s34, {OBUF}
    v_lshl_add_u32 v{aOW}, v{N}, 5, s34
    v_lshl_add_u32 v{aOW}, v{S}, 4, v{aOW}
    s_add_u32 s34, s34, 512
    v_mov_b32 v{T0}, s34
    v_cndmask_b32 v{aOW}, v{aOW}, v{T0}, {sHI}
    v_mov_b32 v{T0}, 512
    v_cmp_gt_u32 vcc, 8, v{L}
    v_cndmask_b32 v{aORD}, v{T0}, v{aRD8}, vcc
    v_lshl_add_u32 v{T0}, v{L}, 4, v{T0}
    v_subrev_u32 v{T0}, 128, v{T0}                     ; 512 + (l-8)*16
    v_cndmask_b32 v{aOS}, v{T0}, v{aRD8}, vcc
    s_mul_i32 s34, s33, 640
    s_add_u32 s34, s34, {OP}
    v_add_u32 v{aOS}, s34, v{aOS}
    s_movk_i32 s92, 0xff
    s_cmp_eq_u32 {sW}, 0
    s_cselect_b32 s92, 0xffff, s92
    s_mov_b32 s93, 0""")
        pair = o.get("pair", 1); helper = o.get("helper", 1)
        a(f"""s_mov_b32 {sROLE}, 0
    s_mov_b32 {sIDX}, {sI}
    s_mov_b64 {sRB}, {WO}
    s_mov_b64 {sEXA}, -1
    s_mov_b32 {sSTA}, {16*1280}
    s_mov_b32 {sST5}, {16*1280}
    s_movk_i32 {sM5}, 1024
    s_mov_b32 s32, 1280
    s_lshl3_add_u32 s33, {sW}, {sG}
    s_mul_i32 s33, s33, {128*1280}
    s_lshl_b32 s34, {sI}, 6
    s_add_u32 s33, s33, s34
    s_bitcmp1_b32 {sI if pair else 0}, 0
    s_cselect_b32 {sST4}, {(-7*16*1280) & 0xffffffff}, {sSTA}
    s_cselect_b32 {sM4}, {(-7*1024) & 0xffffffff}, {sM5}
    s_cselect_b32 s35, {64*1280}, 0
    s_cselect_b32 s36, 4096, 0
    s_cmp_lt_u32 {sI}, 20
    s_cbranch_scc1 L_ROLE_DONE
    s_movk_i32 {sM4}, 1024
    s_sub_u32 s34, {sI}, 20
    s_lshr_b32 s35, s34, 1
    s_lshl3_add_u32 s35, s35, {sG}
    s_cmp_lt_u32 s35, 27
    s_cbranch_scc0 L_ROLE_NOTMLP
    s_and_b32 s34, s34, 1
    s_lshl1_add_u32 {sIDX}, s35, s34
    s_mov_b32 {sROLE}, 1
    s_mov_b64 {sRB}, {W1}
    s_mov_b32 {sSTA}, {16*3456}
    s_mov_b32 {sST4}, {sSTA}
    s_movk_i32 s32, 3456
    s_mul_i32 s33, {sW}, {160*3456}
    s_lshl_b32 s34, {sIDX}, 6
    s_add_u32 s33, s33, s34
    s_bitcmp1_b32 {sI if pair else 0}, 0
    s_cselect_b32 {sST5}, {(-9*16*3456) & 0xffffffff}, {sSTA}
    s_cselect_b32 {sM5}, {(-9*1024) & 0xffffffff}, {sM4}
    s_cselect_b32 s35, {80*3456}, 0
    s_cselect_b32 s36, 5120, 0
    s_branch L_ROLE_DONE
L_ROLE_NOTMLP:
    s_mov_b64 {sRB}, {W2}
    s_movk_i32 s32, 128
    s_mov_b32 s36, 0
    s_sub_u32 s34, {sI}, 28
    s_lshl3_add_u32 {sIDX}, s34, {sG}
    s_cmp_lt_u32 {sIDX}, 20
    s_cselect_b32 {sROLE}, 2, 3
    s_cmp_lt_u32 {sIDX}, {27 if helper else 0}
    s_cselect_b64 {sEXA}, -1, 1
    s_cselect_b32 {sSTA}, 2048, 0
    s_cselect_b32 s33, {sIDX}, 0
    s_mov_b32 {sST4}, {sSTA}
    s_mov_b32 {sST5}, {sSTA}
    s_mul_i32 s33, s33, {64*1280}
    s_mul_i32 s35, {sW}, {16*1280}
L_ROLE_DONE:
    s_add_u32 s33, s33, s35
    s_mul_i32 s35, {sW}, 10240
    s_add_u32 s36, s36, s35
    s_add_u32 m0, s36, {WB1}
    v_lshrrev_b32 v{T0}, 2, v{L}
    v_mul_u32_u24 v{aRA}, s32, v{T0}
    v_and_b32 v{T0}, 3, v{L}
    v_lshl_add_u32 v{aRA}, v{T0}, 4, v{aRA}
    v_add_u32 v{aRA}, s33, v{aRA}""")
    vwait("x")
    stamp(14)
    A1, A2_ = T0, T0 + 2
    for k in range(5):
        a(f"v_dot2_f32_bf16 v{A1}, v{XD+k}, {sONE}, {'0' if k == 0 else 'v%d' % A1}")
        a(f"v_dot2_f32_bf16 v{A2_}, v{XD+k}, v{XD+k}, {'0' if k == 0 else 'v%d' % A2_}")
    Y = AT + 20
    vwait("xr")
    fill = [f"v_lshlrev_b32 v{Y}, 16, v{XR}", f"v_and_b32 v{Y+1}, 0xffff0000, v{XR}", f"v_lshlrev_b32 v{Y+2}, 16, v{XR+1}",
            f"v_and_b32 v{Y+3}, 0xffff0000, v{XR+1}", f"v_lshlrev_b32 v{Y+4}, 16, v{XU}"]
    a(fill[0]); a(fill[1])
    for k, r in enumerate((8, 4, 2, 1)):
        a(f"v_add_f32_dpp v{A1}, v{A1}, v{A1} row_ror:{r} {DPPF}\nv_add_f32_dpp v{A2_}, v{A2_}, v{A2_} row_ror:{r} {DPPF}")
        if k < 3: a(fill[2+k])
    a(f"""v_permlane16_swap_b32 v{A1}, v{A2_}
    v_add_f32 v{A1}, v{A1}, v{A2_}
    v_mov_b32 v{A2_}, v{A1}
    v_permlane32_swap_b32 v{A1}, v{A2_}
    v_add_f32 v{A1}, v{A1}, v{A2_}
    v_mul_f32 v{A1}, {f2u(1/640)}, v{A1}
    v_mov_b32 v{A2_}, v{A1}
    v_permlane16_swap_b32 v{A1}, v{A2_}
    v_fma_f32 v{A2_}, -v{A1}, v{A1}, v{A2_}
    v_max_f32 v{A2_}, 0, v{A2_}
    v_cvt_pk_bf16_f32 v{A1}, v{A1}, v{A2_}
    v_and_b32 v{A2_}, 0xffff0000, v{A1}
    v_lshlrev_b32 v{A1}, 16, v{A1}
    v_add_f32 v{A2_}, {f2u(1e-5)}, v{A2_}""")
    bf(A2_)
    a(f"v_sqrt_f32 v{A2_}, v{A2_}")
    for t in range(5): a(f"v_sub_f32 v{Y+t}, v{Y+t}, v{A1}")
    bf(A2_)
    a(f"v_rcp_f32 v{A2_}, v{A2_}")
    a(f"""v_cvt_pk_bf16_f32 v{Y+1}, v{Y}, v{Y+1}
    v_cvt_pk_bf16_f32 v{Y+3}, v{Y+2}, v{Y+3}
    v_cvt_pk_bf16_f32 v{Y+4}, v{Y+4}, v{Y+4}
    v_lshlrev_b32 v{Y}, 16, v{Y+1}
    v_and_b32 v{Y+1}, 0xffff0000, v{Y+1}
    v_lshlrev_b32 v{Y+2}, 16, v{Y+3}
    v_and_b32 v{Y+3}, 0xffff0000, v{Y+3}
    v_lshlrev_b32 v{Y+4}, 16, v{Y+4}
    v_pk_mul_f32 v[{Y}:{Y+1}], v[{Y}:{Y+1}], v[{A2_}:{A2_+1}] op_sel_hi:[1,0]
    v_pk_mul_f32 v[{Y+2}:{Y+3}], v[{Y+2}:{Y+3}], v[{A2_}:{A2_+1}] op_sel_hi:[1,0]
    v_mul_f32 v{Y+4}, v{Y+4}, v{A2_}""")
    for t in range(5): a(f"v_cvt_pk_bf16_f32 v{Y+t}, v{Y+t}, v{Y+t}")
    for t in range(5):
        for r in range(4): a(f"v_and_b32 v{AT+4*t+r}, v{Y+t}, v{MK+r}")
    stamp(2)
    D = AT + 28
    for t in range(5):
        vwait(f"wq{t}")
        a(f"v_mfma_f32_16x16x32_bf16 {vr(D)}, {vr(AT+4*t)}, {vr(WQD+4*t)}, {'0' if t == 0 else vr(D)}")
    stamp(12)
    seq(o.get("pre2", "kk"))
    a(f"""s_mov_b32 exec_hi, 0
    ds_write_b128 v{aRED}, {vr(D)} offset:{QRED}
    s_waitcnt lgkmcnt(0)
    s_add_u32 {sTAG}, {sTAG}, 0x01010101
    s_mov_b64 exec, -1
    v_mov_b32 v{ST+3}, {sTAG}
    s_mov_b64 exec, 0xff
    s_barrier""")
    for k in range(4): a(f"ds_read_b128 {vr(AT+4*k)}, v{aRD8} offset:{QRED+512*k}")
    a(f"""s_waitcnt lgkmcnt(0)
    v_pk_add_f32 v[{AT}:{AT+1}], v[{AT}:{AT+1}], v[{AT+4}:{AT+5}]
    v_pk_add_f32 v[{AT+2}:{AT+3}], v[{AT+2}:{AT+3}], v[{AT+6}:{AT+7}]
    v_pk_add_f32 v[{AT+8}:{AT+9}], v[{AT+8}:{AT+9}], v[{AT+12}:{AT+13}]
    v_pk_add_f32 v[{AT+10}:{AT+11}], v[{AT+10}:{AT+11}], v[{AT+14}:{AT+15}]
    v_pk_add_f32 v[{AT}:{AT+1}], v[{AT}:{AT+1}], v[{AT+8}:{AT+9}]
    v_pk_add_f32 v[{AT+2}:{AT+3}], v[{AT+2}:{AT+3}], v[{AT+10}:{AT+11}]""")
    pack(ST, AT, AT+1, AT+2, AT+3)
    if qfast: vm("qs", f"global_store_dwordx4 v{aQS}, {vr(ST)}, {WSA}")
    vm("qs", f"global_store_dwordx4 v{aQS}, {vr(ST)}, {WS} sc1\ns_mov_b64 exec, -1")
    stamp(3)
    G = AT
    ng = [0]
    def gload():
        r = FR + 4*ng[0] if ng[0] else G
        vm(f"qg{ng[0]}", f"global_load_dwordx4 {vr(r)}, v{aQG}, {WSA} nt" if qfast else f"global_load_dwordx4 {vr(r)}, v{aQG}, {WS} sc1")
        ng[0] += 1
    nr = [0]
    def rload(n, ex=True):
        if n <= 0: return
        if ex: a(f"s_mov_b64 exec, {sEXA}")
        for _ in range(n):
            u = nr[0]; nr[0] += 1
            if u > 0:
                a(f"s_add_u32 m0, m0, {sM4 if u == 4 else sM5 if u == 5 else 1024}")
                a(f"v_add_u32 v{aRA}, {sST4 if u == 4 else sST5 if u == 5 else sSTA}, v{aRA}")
            vm("r", f"global_load_lds_dwordx4 v{aRA}, {sRB}{NT}")
        if ex: a("s_mov_b64 exec, -1")
    dep = o.get("dep", 0)
    for ch in o.get("post", "kkksp6vvvvgvvvvg"):
        if dep and ch in "kvgr": a(f"s_waitcnt vmcnt({dep-1})")
        if ch == "v": vload(nv[0]); nv[0] += 1
        elif ch == "k": kload(nk[0]); nk[0] += 1
        elif ch == "g":
            if ng[0] == 0: stamp(4); nvb = nv[0]; assert nk[0] == 8
            gload()
        elif ch == "r": rload(1)
        elif ch == "s": late_setup(); stamp(13)
        elif ch == "p": vm("pw", f"s_mov_b64 exec, {sEXO}\nglobal_load_dword v{FR+1}, v{aOS}, {WSA} nt\ns_mov_b64 exec, -1")
        elif ch == "t":
            vm("t", f"s_mov_b64 exec, 1\nglobal_load_dword v{FR+2}, v{aRA}, {sRB}")
            vm("t", f"s_mul_i32 s32, {sIDX}, 40960\ns_min_u32 s32, s32, {53*40960}\nv_mov_b32 v{T0}, s32\nglobal_load_dword v{FR+3}, v{T0}, {W2}\ns_mov_b64 exec, -1")
        elif ch.isdigit(): dep = int(ch)
    assert nv[0] == 8
    stamp(11)
    a(f"s_movk_i32 {sCNT}, {spin-1}")
    for k in range(ng[0]):
        vwait(f"qg{k}")
        r = FR + 4*k if k else G
        a(f"v_cmp_ne_u32 vcc, {sTAG}, v{r+3}")
        if k: a(f"v_mov_b32 v{G}, v{r}\nv_mov_b32 v{G+1}, v{r+1}\nv_mov_b32 v{G+2}, v{r+2}")
        a("s_cbranch_vccz L_QOK")
    a(f"""L_QPOLL:
    s_sub_u32 {sCNT}, {sCNT}, 1
    s_cbranch_scc1 L_QOK""")
    if qfast:
        a(f"""s_and_b32 s33, {sCNT}, 15
        s_cbranch_scc1 L_QFAST
        global_load_dwordx4 {vr(G)}, v{aQG}, {WS} sc1
        s_branch L_QCHK
L_QFAST:
        global_load_dwordx4 {vr(G)}, v{aQG}, {WSA} nt
L_QCHK:""")
    else: a(f"global_load_dwordx4 {vr(G)}, v{aQG}, {WS} sc1")
    a(f"""s_waitcnt vmcnt(0)
    v_cmp_ne_u32 vcc, {sTAG}, v{G+3}
    s_cbranch_vccnz L_QPOLL
L_QOK:""")
    stamp(5)
    unpack(G)
    a(f"""v_permlane32_swap_b32 v{G}, v{G+1}
    v_permlane32_swap_b32 v{G+2}, v{G+3}
    v_add_f32 v{G}, v{G}, v{G+1}
    v_add_f32 v{G+2}, v{G+2}, v{G+3}
    v_permlane16_swap_b32 v{G}, v{G+2}
    v_add_f32 v{G}, v{G}, v{G+2}
    v_add_f32_dpp v{G}, v{G}, v{G} row_ror:8 {DPPF}
    v_cvt_pk_bf16_f32 v{G}, v{G}, v{G}
    ds_write_b16 v{aQW}, v{G}""")
    rload(o.get("rok", 0))
    a("s_waitcnt lgkmcnt(0)\ns_barrier")
    Q = WQD
    for c in range(4): a(f"ds_read_b128 {vr(Q+4*c)}, v{aQA} offset:{QZ+192-64*c}")
    D0, D1 = T0, T0 + 4
    for c in range(4):
        a(f"s_waitcnt lgkmcnt({0 if stamps else 3-c})")
        a(f"v_mfma_f32_16x16x32_bf16 {vr(D0)}, {vr(Q+4*c)}, {vr(KD+4*c)}, {'0' if c == 0 else vr(D0)}")
        a(f"v_mfma_f32_16x16x32_bf16 {vr(D1)}, {vr(Q+4*c)}, {vr(KD+16+4*c)}, {'0' if c == 0 else vr(D1)}")
    SC, SR, MX, PK, LS, TT = 24, 24, 26, 27, 6, 7
    a(f"""s_mov_b32 vcc_lo, 0xaaaaaaaa
    s_mov_b32 vcc_hi, 0xaaaaaaaa
    v_add_f32_dpp v{D0+2}, v{D0+3}, v{D0+2} quad_perm:[3,3,3,3] {DPPF}
    v_add_f32_dpp v{D0}, v{D0+1}, v{D0} quad_perm:[1,1,1,1] {DPPF}
    v_add_f32_dpp v{D1+2}, v{D1+3}, v{D1+2} quad_perm:[3,3,3,3] {DPPF}
    v_add_f32_dpp v{D1+1}, v{D1}, v{D1+1} quad_perm:[0,0,0,0] {DPPF}
    v_add_f32_dpp v{D0}, v{D0+2}, v{D0} quad_perm:[2,2,2,2] {DPPF}
    v_add_f32_dpp v{D1+1}, v{D1+2}, v{D1+1} quad_perm:[2,2,2,2] {DPPF}
    v_cndmask_b32 v{SC}, v{D0}, v{D1+1}, vcc""")
    bf(SC)
    a(f"v_mul_f32 v{SC}, {sSCL}, v{SC}")
    bf(SC)
    a(f"v_max_f32_dpp v{MX}, v{SC}, v{SC} quad_perm:[1,0,3,2] {DPPF}")
    for r in (4, 8): a(f"v_max_f32_dpp v{MX}, v{MX}, v{MX} row_ror:{r} {DPPF}")
    a(f"""v_mov_b32 v{TT}, v{MX}
    v_permlane32_swap_b32 v{MX}, v{TT}
    v_max_f32 v{MX}, v{MX}, v{TT}""")
    a(f"""v_mov_b32 v{TT}, v{MX}
    v_permlane16_swap_b32 v{MX}, v{TT}
    v_max_f32 v{MX}, v{MX}, v{TT}
    v_sub_f32 v{SR}, v{SR}, v{MX}
    v_mul_f32 v{SR}, {sL2E}, v{SR}
    v_exp_f32 v{SR}, v{SR}
    s_lshl_b32 s32, {sW}, 2
    v_mov_b32 v{TT}, s32
    v_cvt_pk_bf16_f32 v{PK}, v{SR}, v{SR}
    s_mov_b64 exec, 1
    ds_write_b32 v{TT}, v{MX} offset:{MBUF}
    s_mov_b64 exec, -1
    v_and_b32 v{LS}, 0xffff0000, v{PK}""")
    lsum = ([f"v_add_f32_dpp v{LS}, v{LS}, v{LS} quad_perm:[1,0,3,2] {DPPF}"] + [f"v_add_f32_dpp v{LS}, v{LS}, v{LS} row_ror:{r} {DPPF}" for r in (4, 8)]
            + [f"v_mov_b32 v{TT}, v{LS}", f"v_permlane16_swap_b32 v{LS}, v{TT}", f"v_add_f32 v{LS}, v{LS}, v{TT}\nv_mov_b32 v{TT}, v{LS}",
               f"v_permlane32_swap_b32 v{LS}, v{TT}", f"v_add_f32 v{LS}, v{LS}, v{TT}"])
    for u in range(8):
        for r in range(4): a(f"v_and_b32_dpp v{AT+4*u+r}, v{PK}, v{MK+r} row_newbcast:{4*(u>>1)+(u&1)} {DPPF}")
        a(lsum[u])
    rload(o.get("rsm", 0))
    stamp(6)
    DO = T0
    for u in range(8):
        if u >= nvb: vwait(f"v{u}")
        a(f"v_mfma_f32_16x16x32_bf16 {vr(DO)}, {vr(AT+4*u)}, {vr(VD+4*u)}, {'0' if u == 0 else vr(DO)}")
    rload(o.get("rpv", 0))
    a(f"""s_mov_b32 exec_hi, 1
    v_cndmask_b32 v{DO}, v{DO}, v{LS}, {sHI}
    ds_write_b128 v{aOW}, {vr(DO)}
    v_mov_b32 v{TT}, 0
    s_waitcnt lgkmcnt(0)
    s_mov_b64 exec, {sEXO}
    s_barrier
    ds_read_b128 {vr(AT+16)}, v{TT} offset:{MBUF}""")
    for k in range(4): a(f"ds_read_b128 {vr(AT+4*k)}, v{aORD} offset:{OBUF+528*k}")
    M4 = AT + 16
    a(f"""s_waitcnt lgkmcnt({0 if stamps else 4})
    v_max3_f32 v{MX}, v{M4}, v{M4+1}, v{M4+2}
    v_max_f32 v{MX}, v{MX}, v{M4+3}""")
    for k in range(4): a(f"v_sub_f32 v{M4+k}, v{M4+k}, v{MX}")
    for k in range(4): a(f"v_mul_f32 v{M4+k}, {sL2E}, v{M4+k}")
    for k in range(4): a(f"v_exp_f32 v{M4+k}, v{M4+k}")
    a(f"""v_cmp_lt_u32 vcc, 7, v{L}
    s_waitcnt lgkmcnt(0)
    v_pk_mul_f32 v[{AT}:{AT+1}], v[{AT}:{AT+1}], v[{M4}:{M4+1}] op_sel_hi:[1,0]
    v_pk_mul_f32 v[{AT+2}:{AT+3}], v[{AT+2}:{AT+3}], v[{M4}:{M4+1}] op_sel_hi:[1,0]
    v_pk_fma_f32 v[{AT}:{AT+1}], v[{AT+4}:{AT+5}], v[{M4}:{M4+1}], v[{AT}:{AT+1}] op_sel:[0,1,0]
    v_pk_fma_f32 v[{AT+2}:{AT+3}], v[{AT+6}:{AT+7}], v[{M4}:{M4+1}], v[{AT+2}:{AT+3}] op_sel:[0,1,0]
    v_pk_fma_f32 v[{AT}:{AT+1}], v[{AT+8}:{AT+9}], v[{M4+2}:{M4+3}], v[{AT}:{AT+1}] op_sel_hi:[1,0,1]
    v_pk_fma_f32 v[{AT+2}:{AT+3}], v[{AT+10}:{AT+11}], v[{M4+2}:{M4+3}], v[{AT+2}:{AT+3}] op_sel_hi:[1,0,1]
    v_pk_fma_f32 v[{AT}:{AT+1}], v[{AT+12}:{AT+13}], v[{M4+2}:{M4+3}], v[{AT}:{AT+1}] op_sel:[0,1,0]
    v_pk_fma_f32 v[{AT+2}:{AT+3}], v[{AT+14}:{AT+15}], v[{M4+2}:{M4+3}], v[{AT+2}:{AT+3}] op_sel:[0,1,0]
    v_cndmask_b32 v{AT+1}, v{AT+1}, v{MX}, vcc""")
    pack(ST, AT, AT+1, AT+2, AT+3)
    if o.get("fast", 1): vm("os", f"global_store_dwordx4 v{aOS}, {vr(ST)}, {WSA}")
    vm("os", f"global_store_dwordx4 v{aOS}, {vr(ST)}, {WS} sc1\ns_mov_b64 exec, -1")
    stamp(7)
    rload(8 - nr[0])
    assert nr[0] == 8
    vq0 = list(vq)
    aT = aXA
    a(f"""v_bfe_u32 v{T0}, v{L}, 2, 2
    v_lshl_add_u32 v{T0}, v{S}, 3, v{T0}               ; 8s + r
    v_and_b32 v{T0+1}, 3, v{L}
    v_lshlrev_b32 v{T0+1}, 3, v{T0+1}                  ; cc*8
    s_mul_i32 s32, {sW}, 10240
    s_add_u32 s33, s32, {WB1}
    v_lshl_add_u32 v{aT}, v{T0}, 6, s33
    v_add_u32 v{aT}, v{T0+1}, v{aT}
    s_movk_i32 {sCNT}, {spin-1}
    s_cmp_lg_u32 {sROLE}, 0
    s_cbranch_scc1 L_NWO""")
    aPO, aPM, aVW, aVR, aYW, aYS = 221, 222, 223, 224, 225, 226
    a(f"""s_lshl3_add_u32 s32, {sW}, {sG}
    s_mul_i32 s32, s32, {8*640}
    s_add_u32 s32, s32, {OP}
    v_lshrrev_b32 v{T0}, 5, v{L}                       ; hf
    v_and_b32 v{T0+1}, 31, v{L}                        ; gq
    s_movk_i32 s33, 2560
    v_mul_u32_u24 v{aPO}, s33, v{T0}
    v_lshl_add_u32 v{aPO}, v{T0+1}, 4, v{aPO}
    v_add_u32 v{aPO}, s32, v{aPO}
    v_and_b32 v{T0+2}, 7, v{L}
    v_lshlrev_b32 v{T0+3}, 2, v{T0}
    v_xor_b32 v{T0+2}, v{T0+2}, v{T0+3}
    s_movk_i32 s33, 640
    v_mul_u32_u24 v{aPM}, s33, v{T0+2}
    v_add_u32 v{aPM}, s32, v{aPM}""")
    ML = AT + 16
    fast = o.get("fast", 1)
    def opoll(base, bits):
        a(f"global_load_dwordx4 {vr(ML)}, v{aPM}, {base} offset:512 {bits}")
        for i in range(4): a(f"global_load_dwordx4 {vr(AT+4*i)}, v{aPO}, {base} offset:{640*i} {bits}")
    if fast: opoll(WSA, "nt")
    else: opoll(WS, "sc1")
    a(f"""s_lshl_b32 s33, {sW}, 8
    s_add_u32 s33, s33, {OVEC}
    v_lshl_add_u32 v{aVW}, v{T0+1}, 3, s33
    v_add_u32 v{aVW}, v{T0+3}, v{aVW}
    v_add_u32 v{aVR}, s33, v{aFR}
    s_lshl_b32 s33, {sW}, 7
    v_add_u32 v{aYW}, s33, v{aFR}
    s_mul_i32 s33, {sG}, 2560
    s_lshl_b32 s34, {sIDX}, 7
    s_add_u32 s33, s33, s34
    s_add_u32 s33, s33, {YP}
    v_and_b32 v{aRD8}, 7, v{L}
    v_lshlrev_b32 v{aRD8}, 4, v{aRD8}
    v_lshrrev_b32 v{T0}, 3, v{L}
    s_movk_i32 s34, {YCS}
    v_mad_u32_u24 v{aYS}, v{T0}, s34, v{aRD8}
    v_add_u32 v{aYS}, s33, v{aYS}
    s_waitcnt vmcnt(5)""")
    for c in range(4):
        for cg in range(2):
            for hh in range(2):
                b = FR + 8*c + 4*cg + 2*hh
                a(f"ds_read_b64_tr_b16 v[{b}:{b+1}], v{aT} offset:{c*2048 + hh*256 + cg*32}")
    stamp(8)
    a("s_branch L_OCHK\nL_OPOLL:")
    a(f"""s_sub_u32 {sCNT}, {sCNT}, 1
    s_cbranch_scc1 L_OOK""")
    if fast:
        a(f"s_and_b32 s33, {sCNT}, 15\ns_cbranch_scc1 L_OFAST")
        opoll(WS, "sc1")
        a("s_branch L_OCHK\nL_OFAST:")
        opoll(WSA, "nt")
    else: opoll(WS, "sc1")
    a("L_OCHK:\ns_waitcnt vmcnt(0)")
    check(ACC, ML, True)
    for i in range(4): check(ACC, AT+4*i, False)
    a(f"""v_cmp_ne_u32 vcc, 0, v{ACC}
    s_cbranch_vccnz L_OPOLL
L_OOK:""")
    stamp(9)
    F, FL = 24, 25
    ups = []
    for i in range(4):
        g = AT + 4*i
        ups += [f"v_perm_b32 v{g+3}, v{g+1}, v{g}, {sUN}", f"v_lshl_or_b32 v{g+3}, v{g+2}, 24, v{g+3}"]
    a(f"v_max_f32_dpp v{MX}, v{ML+1}, v{ML+1} row_half_mirror {DPPF}")
    a(ups[0]); a(ups[1])
    a(f"v_max_f32_dpp v{MX}, v{MX}, v{MX} quad_perm:[1,0,3,2] {DPPF}")
    a(ups[2]); a(ups[3])
    a(f"v_max_f32_dpp v{MX}, v{MX}, v{MX} quad_perm:[2,3,0,1] {DPPF}")
    a(f"v_sub_f32 v{F}, v{ML+1}, v{MX}\nv_mul_f32 v{F}, {sL2E}, v{F}\nv_exp_f32 v{F}, v{F}")
    a(ups[4]); a(ups[5]); a(ups[6]); a(ups[7])
    a(f"v_mul_f32 v{FL}, v{F}, v{ML}")
    E = T0
    lch = [f"v_add_f32_dpp v{FL}, v{FL}, v{FL} row_half_mirror {DPPF}", f"v_add_f32_dpp v{FL}, v{FL}, v{FL} quad_perm:[1,0,3,2] {DPPF}",
           f"v_add_f32_dpp v{FL}, v{FL}, v{FL} quad_perm:[2,3,0,1] {DPPF}", f"v_rcp_f32 v{FL}, v{FL}"]
    for i in range(4):
        for r in range(4):
            a(f"v_{'mul' if i == 0 else 'fmac'}_f32_dpp v{E+r}, v{F}, v{AT+4*i+r} row_newbcast:{i} {DPPF}")
        a(lch[i])
    a(f"""v_permlane32_swap_b32 v{E}, v{E+2}
    v_permlane32_swap_b32 v{E+1}, v{E+3}
    v_pk_add_f32 v[{E}:{E+1}], v[{E}:{E+1}], v[{E+2}:{E+3}]
    v_mul_f32 v{E}, v{E}, v{FL}
    v_mul_f32 v{E+1}, v{E+1}, v{FL}
    v_cvt_pk_bf16_f32 v{E}, v{E}, v{E+1}
    ds_write_b32 v{aVW}, v{E}""")
    for c in range(4): a(f"ds_read_b128 {vr(AT+4*c)}, v{aVR} offset:{64*c}")
    for c in range(4):
        a(f"s_waitcnt lgkmcnt({0 if stamps else 3-c})")
        for cg in range(2):
            d = T0 + 4*cg
            a(f"v_mfma_f32_16x16x32_bf16 {vr(d)}, {vr(FR+8*c+4*cg)}, {vr(AT+4*c)}, {'0' if c == 0 else vr(d)}")
    a(f"""s_mov_b32 exec_lo, 0x00010001
    s_mov_b32 exec_hi, 0x00010001
    ds_write_b128 v{aYW}, {vr(T0)} offset:{YRED}
    ds_write_b128 v{aYW}, {vr(T0+4)} offset:{YRED+64}
    s_cmp_lg_u32 {sW}, 0
    s_waitcnt lgkmcnt(0)
    s_mov_b64 exec, -1
    s_barrier
    s_cbranch_scc1 L_DONE""")
    for k in range(4): a(f"ds_read_b128 {vr(AT+4*k)}, v{aRD8} offset:{YRED+128*k}")
    a(f"""s_waitcnt lgkmcnt(0)
    v_pk_add_f32 v[{AT}:{AT+1}], v[{AT}:{AT+1}], v[{AT+4}:{AT+5}]
    v_pk_add_f32 v[{AT+2}:{AT+3}], v[{AT+2}:{AT+3}], v[{AT+6}:{AT+7}]
    v_pk_add_f32 v[{AT+8}:{AT+9}], v[{AT+8}:{AT+9}], v[{AT+12}:{AT+13}]
    v_pk_add_f32 v[{AT+10}:{AT+11}], v[{AT+10}:{AT+11}], v[{AT+14}:{AT+15}]
    v_pk_add_f32 v[{AT}:{AT+1}], v[{AT}:{AT+1}], v[{AT+8}:{AT+9}]
    v_pk_add_f32 v[{AT+2}:{AT+3}], v[{AT+2}:{AT+3}], v[{AT+10}:{AT+11}]""")
    pack(ST, AT, AT+1, AT+2, AT+3)
    a(f"global_store_dwordx4 v{aYS}, {vr(ST)}, {WS} sc1")
    stamp(10)
    a("s_branch L_DONE")

    aY, aHW, XH = 221, 224, 92
    YA, YB = 28, 60
    def hsetup():
        a(f"""s_mul_i32 s33, {sW}, 320
        v_lshl_add_u32 v{aHW}, v{L}, 3, s33
        s_mov_b32 exec_hi, 0xff""")
        vm("xh", f"global_load_dwordx2 v[{XH+4}:{XH+5}], v{aHW}, {X}")
        a(f"""s_mov_b32 exec_hi, -1
        s_mul_i32 s34, {sG}, {YCS}
        s_add_u32 s34, s34, {YP+2560}
        v_lshl_add_u32 v{aY}, v{aHW}, 1, s34
        v_add_u32 v{aY+1}, {3*2560}, v{aY}
        v_add_u32 v{aY+2}, {6*2560}, v{aY}""")
    def xunpack():
        a(f"""v_lshlrev_b32 v{XH}, 16, v{XH+4}
        v_and_b32 v{XH+1}, 0xffff0000, v{XH+4}
        v_lshlrev_b32 v{XH+2}, 16, v{XH+5}
        v_and_b32 v{XH+3}, 0xffff0000, v{XH+5}""")
    def yissue(B):
        for g in range(8):
            vm("y", f"global_load_dwordx4 {vr(B+4*g)}, v{aY+g//3}, {WS} offset:{(g%3-1)*2560} sc1")
    def yproc(B, ahead):
        for g in range(8):
            a(f"s_waitcnt vmcnt({7-g+ahead})")
            check(ACC, B+4*g, g == 0)
            unpack(B+4*g)
            if g:
                s0 = B if g == 1 else AT
                a(f"v_pk_add_f32 v[{AT}:{AT+1}], v[{s0}:{s0+1}], v[{B+4*g}:{B+4*g+1}]")
                a(f"v_pk_add_f32 v[{AT+2}:{AT+3}], v[{s0+2}:{s0+3}], v[{B+4*g+2}:{B+4*g+3}]")
        a(f"v_cmp_ne_u32 vcc, 0, v{ACC}")
    def hgather(tag, st, two):
        if two:
            a(f"L_YPOLL{tag}:")
            yissue(YB)
            yproc(YA, 8)
            a(f"s_cbranch_vccz L_YOK{tag}")
            yissue(YA)
            a(f"s_sub_u32 {sCNT}, {sCNT}, 1\ns_cbranch_scc1 L_YOK{tag}")
            yproc(YB, 8)
            a(f"s_cbranch_vccnz L_YPOLL{tag}")
        else:
            a(f"s_branch L_YCHK{tag}\nL_YPOLL{tag}:")
            yissue(YA)
            a(f"s_sub_u32 {sCNT}, {sCNT}, 1\ns_cbranch_scc1 L_YOK{tag}\nL_YCHK{tag}:")
            yproc(YA, 0)
            a(f"s_cbranch_vccnz L_YPOLL{tag}")
        a(f"L_YOK{tag}:")
        stamp(st)
        a(f"""v_cvt_pk_bf16_f32 v{AT+4}, v{AT}, v{AT+1}
        v_cvt_pk_bf16_f32 v{AT+5}, v{AT+2}, v{AT+3}
        v_lshlrev_b32 v{AT}, 16, v{AT+4}
        v_and_b32 v{AT+1}, 0xffff0000, v{AT+4}
        v_lshlrev_b32 v{AT+2}, 16, v{AT+5}
        v_and_b32 v{AT+3}, 0xffff0000, v{AT+5}
        v_pk_add_f32 v[{AT}:{AT+1}], v[{AT}:{AT+1}], v[{XH}:{XH+1}]
        v_pk_add_f32 v[{AT+2}:{AT+3}], v[{AT+2}:{AT+3}], v[{XH+2}:{XH+3}]
        v_cvt_pk_bf16_f32 v{AT}, v{AT}, v{AT+1}
        v_cvt_pk_bf16_f32 v{AT+1}, v{AT+2}, v{AT+3}
        ds_write_b64 v{aHW}, v[{AT}:{AT+1}] offset:{HVEC}""")

    a("L_NWO:")
    vq[:] = vq0
    rload(2)
    a(f"""s_cmp_eq_u32 {sROLE}, 3
    s_cbranch_scc1 L_DONE""")
    hsetup()
    a(f"""s_cmp_eq_u32 {sROLE}, 2
    s_cbranch_scc1 L_FIN""")
    vq1 = list(vq)
    aT2, aHR, aXW, aXR2, aPS, CS, MG = 225, 226, 227, 228, 229, 230, 231
    a(f"""s_mul_i32 s34, {sIDX}, {32*1280}
    s_add_u32 s34, s34, s33
    s_add_u32 m0, s32, {WB2}
    s_movk_i32 s35, 3277
    s_movk_i32 s36, 960
    v_lshl_add_u32 v{T0+2}, v{L}, 4, s34
    v_mul_u32_u24 v{T0+3}, s35, v{L}""")
    for u in range(10):
        a(f"""v_lshrrev_b32 v{T0+4}, 16, v{T0+3}
        v_mad_u32_u24 v{T0+5+(u&1)}, v{T0+4}, s36, v{T0+2}""")
        vm("w2", f"global_load_lds_dwordx4 v{T0+5+(u&1)}, {W2}{NT}")
        if u < 9:
            a(f"""s_add_u32 m0, m0, 1024
            v_add_u32 v{T0+2}, 1024, v{T0+2}
            v_add_u32 v{T0+3}, {64*3277}, v{T0+3}""")
    a(f"""s_movk_i32 s35, 320
    s_add_u32 s36, s32, {WB2}
    v_mul_u32_u24 v{aT2}, s35, v{T0}
    v_add3_u32 v{aT2}, v{aT2}, v{T0+1}, s36
    v_add_u32 v{aHR}, s33, v{aFR}
    v_and_b32 v{T0}, 31, v{L}
    s_lshl_b32 s35, {sW}, 2
    v_lshl_add_u32 v{aXW}, v{T0}, 4, s35
    v_and_b32 v{T0}, 7, v{L}
    v_lshl_add_u32 v{T0}, v{S}, 3, v{T0}
    v_lshlrev_b32 v{aXR2}, 4, v{T0}
    s_mul_i32 s35, {sIDX}, 2560
    s_mul_i32 s36, {sW}, 640
    s_add_u32 s35, s35, s36
    s_add_u32 s35, s35, {PP}
    v_lshl_add_u32 v{aPS}, v{L}, 4, s35
    v_lshrrev_b32 v{T0}, 2, v{N}""")
    for G_ in range(3):
        a(f"v_cmp_eq_u32 vcc, {G_}, v{T0}\nv_cndmask_b32 v{MG+G_}, 0, -1, vcc")
    for r in range(4): a(f"v_mov_b32 v{AT+r}, 0x3f803f80")
    vwait("xh")
    for c in range(5):
        for cg in range(2):
            for hh in range(2):
                b = FR + 8*c + 4*cg + 2*hh
                a(f"ds_read_b64_tr_b16 v[{b}:{b+1}], v{aT} offset:{c*2048 + hh*256 + cg*32}")
    xunpack()
    a("s_waitcnt lgkmcnt(0)")
    for c in range(5):
        for cg in range(2):
            d = T0 + 4*cg
            a(f"v_mfma_f32_16x16x32_bf16 {vr(d)}, {vr(AT)}, {vr(FR+8*c+4*cg)}, {'0' if c == 0 else vr(d)}")
    a(f"""v_cndmask_b32 v{T0}, v{T0}, v{T0+4}, {sODD}
    ds_write_b32 v{aXW}, v{T0} offset:{CSRED}
    s_waitcnt lgkmcnt(0)
    s_barrier
    ds_read_b128 {vr(T0)}, v{aXR2} offset:{CSRED}
    s_waitcnt vmcnt(0)
    s_mov_b32 exec_hi, 0xff""")
    yissue(YA)
    a("s_mov_b32 exec_hi, -1")
    F2 = FR + 40
    for i in range(10):
        for hh in range(2):
            b = F2 + 4*i + 2*hh
            a(f"ds_read_b64_tr_b16 v[{b}:{b+1}], v{aT2} offset:{hh*1280 + i*32}")
    S1, S2 = 24, 25
    a(f"""v_mov_b32 v{S1}, 0
    v_mov_b32 v{S2}, 0
    s_lshl_b32 s35, {sW}, 2
    v_mov_b32 v{TT}, s35
    v_mov_b32 v{LS}, 0
    s_waitcnt lgkmcnt(0)
    v_pk_add_f32 v[{T0}:{T0+1}], v[{T0}:{T0+1}], v[{T0+2}:{T0+3}]
    v_add_f32 v{CS}, v{T0}, v{T0+1}
    s_mov_b32 exec_hi, 0xff""")
    stamp(8)
    hgather("M", 9, o.get("y2", 1))
    HA = AT + 12
    a(f"""v_lshlrev_b32 v{AT+4}, 16, v{AT}
    v_and_b32 v{AT+5}, 0xffff0000, v{AT}
    v_lshlrev_b32 v{AT+6}, 16, v{AT+1}
    v_and_b32 v{AT+7}, 0xffff0000, v{AT+1}
    v_pk_mul_f32 v[{AT+8}:{AT+9}], v[{AT+4}:{AT+5}], v[{AT+4}:{AT+5}]
    v_pk_add_f32 v[{AT+4}:{AT+5}], v[{AT+4}:{AT+5}], v[{AT+6}:{AT+7}]
    v_pk_fma_f32 v[{AT+8}:{AT+9}], v[{AT+6}:{AT+7}], v[{AT+6}:{AT+7}], v[{AT+8}:{AT+9}]
    v_add_f32 v{S1}, v{AT+4}, v{AT+5}
    v_add_f32 v{S2}, v{AT+8}, v{AT+9}
    s_mov_b32 exec_hi, -1""")
    for c in range(5): a(f"ds_read_b128 {vr(HA+4*c)}, v{aHR} offset:{HVEC+64*c}")
    for r in (8, 4, 2, 1):
        a(f"v_add_f32_dpp v{S1}, v{S1}, v{S1} row_ror:{r} {DPPF}\nv_add_f32_dpp v{S2}, v{S2}, v{S2} row_ror:{r} {DPPF}")
    a(f"""v_permlane16_swap_b32 v{S1}, v{S2}
    v_add_f32 v{S1}, v{S1}, v{S2}
    v_mov_b32 v{S2}, v{S1}
    v_permlane32_swap_b32 v{S1}, v{S2}
    v_add_f32 v{S1}, v{S1}, v{S2}
    v_add_u32 v{TT}, v{TT}, v{aFR}""")
    for c in range(5):
        a(f"s_waitcnt lgkmcnt({0 if stamps else 4-c})")
        for cg in range(2):
            d = T0 + 4*cg
            a(f"v_mfma_f32_16x16x32_bf16 {vr(d)}, {vr(HA+4*c)}, {vr(FR+8*c+4*cg)}, {'0' if c == 0 else vr(d)}")
    a(f"""s_mov_b64 exec, 0x10001
    ds_write_b32 v{TT}, v{S1} offset:{STAT}
    s_mov_b32 exec_lo, -1
    v_cndmask_b32 v{T0}, v{T0}, v{T0+4}, {sODD}
    ds_write_b32 v{aXW}, v{T0} offset:{HRED}
    s_mov_b64 exec, -1
    s_waitcnt lgkmcnt(0)
    s_barrier
    ds_read_b128 {vr(AT)}, v{LS} offset:{STAT}
    ds_read_b128 {vr(AT+4)}, v{LS} offset:{STAT+16}
    ds_read_b128 {vr(AT+8)}, v{aXR2} offset:{HRED}
    s_waitcnt lgkmcnt({0 if stamps else 1})
    v_pk_add_f32 v[{AT}:{AT+1}], v[{AT}:{AT+1}], v[{AT+2}:{AT+3}]
    v_pk_add_f32 v[{AT+4}:{AT+5}], v[{AT+4}:{AT+5}], v[{AT+6}:{AT+7}]
    v_add_f32 v{AT}, v{AT}, v{AT+1}
    v_add_f32 v{AT+4}, v{AT+4}, v{AT+5}
    v_mul_f32 v{AT}, {f2u(1/640)}, v{AT}
    v_mul_f32 v{AT+4}, {f2u(1/640)}, v{AT+4}
    v_fma_f32 v{AT+4}, -v{AT}, v{AT}, v{AT+4}
    v_max_f32 v{AT+4}, 0, v{AT+4}
    v_cvt_pk_bf16_f32 v{AT}, v{AT}, v{AT+4}
    v_and_b32 v{AT+4}, 0xffff0000, v{AT}
    v_lshlrev_b32 v{AT}, 16, v{AT}
    v_add_f32 v{AT+4}, {f2u(1e-5)}, v{AT+4}""")
    bf(AT+4)
    a(f"""v_sqrt_f32 v{AT+4}, v{AT+4}
    s_waitcnt lgkmcnt(0)
    v_pk_add_f32 v[{AT+8}:{AT+9}], v[{AT+8}:{AT+9}], v[{AT+10}:{AT+11}]""")
    bf(AT+4)
    a(f"""v_rcp_f32 v{AT+4}, v{AT+4}
    v_add_f32 v{AT+8}, v{AT+8}, v{AT+9}
    v_fma_f32 v{AT+8}, -v{AT}, v{CS}, v{AT+8}
    v_max_f32 v{AT+8}, 0, v{AT+8}
    v_mul_f32 v{AT+8}, v{AT+8}, v{AT+4}
    v_mov_b32_dpp v{AT+9}, v{AT+8} quad_perm:[1,1,3,3] {DPPF}
    v_cvt_pk_bf16_f32 v{PK}, v{AT+8}, v{AT+9}""")
    A2 = AT + 12; D2 = 8
    def mk(G_):
        for r in range(4): a(f"v_and_b32_dpp v{A2+4*G_+r}, v{PK}, v{MG+G_} row_newbcast:{2*r} {DPPF}")
    mk(0); mk(1)
    for i in range(10):
        G_ = i // 4; d = D2 + 4*(i % 4)
        a(f"v_mfma_f32_16x16x32_bf16 {vr(d)}, {vr(A2+4*G_)}, {vr(F2+4*i)}, {'0' if G_ == 0 else vr(d)}")
        if i == 1: mk(2)
    a(f"""v_mov_b32_dpp v{D2+8}, v{D2} row_ror:8 row_mask:0x4 bank_mask:0xf
    v_mov_b32_dpp v{D2+12}, v{D2+4} row_ror:8 row_mask:0x4 bank_mask:0xf
    s_mov_b32 exec_hi, 0xff""")
    pack(ST, D2, D2+4, D2+8, D2+12)
    a(f"global_store_dwordx4 v{aPS}, {vr(ST)}, {WS} sc1")
    stamp(10)
    a("s_branch L_DONE")

    a("L_FIN:")
    aP, aC, HV = 225, 227, 228
    a(f"""s_lshl_b32 s34, {sIDX}, 3
    s_lshl_b32 s35, {sW}, 1
    s_add_u32 s34, s34, s35
    v_and_b32 v{T0}, 1, v{L}
    v_add_u32 v{T0}, s34, v{T0}                        ; GI
    v_lshrrev_b32 v{T0+1}, 1, v{L}
    s_movk_i32 s35, 2560
    v_mul_u32_u24 v{aP}, s35, v{T0+1}
    v_lshl_add_u32 v{aP}, v{T0}, 4, v{aP}
    v_add_u32 v{aP}, {PP}, v{aP}
    v_add_u32 v{aP+1}, {32*2560}, v{aP}
    v_mul_u32_u24 v{T0+1}, 205, v{T0}
    v_lshrrev_b32 v{T0+1}, 13, v{T0+1}                 ; wp
    v_mul_u32_u24 v{T0+2}, 40, v{T0+1}
    v_sub_u32 v{T0}, v{T0}, v{T0+2}                    ; lane'
    v_lshlrev_b32 v{T0+1}, 2, v{T0+2}                  ; 160*wp
    v_and_b32 v{T0+2}, 1, v{S}                         ; r>>1
    v_lshrrev_b32 v{T0+3}, 1, v{S}                     ; r&1
    v_lshl_add_u32 v{T0+1}, v{T0+3}, 4, v{T0+1}
    v_and_b32 v{T0+4}, 15, v{T0}
    v_add_u32 v{T0+1}, v{T0+4}, v{T0+1}
    v_lshrrev_b32 v{T0+4}, 4, v{T0}
    v_lshl_add_u32 v{T0+1}, v{T0+4}, 6, v{T0+1}
    v_cmp_gt_u32 vcc, 32, v{T0}
    v_cndmask_b32 v{T0+4}, 8, 32, vcc
    v_mad_u32_u24 v{T0+1}, v{T0+2}, v{T0+4}, v{T0+1}   ; col
    v_lshlrev_b32 v{aC}, 1, v{T0+1}
    s_waitcnt vmcnt(0)
    s_mov_b32 exec_hi, 0xff""")
    yissue(YA)
    xunpack()
    hgather("F", 8, 0)
    PA, PB = FR, FR + 8
    def pissue(B):
        a(f"""global_load_dwordx4 {vr(B)}, v{aP}, {WS} sc1
        s_mov_b32 exec_hi, 0xfff
        global_load_dwordx4 {vr(B+4)}, v{aP+1}, {WS} sc1
        s_mov_b32 exec_hi, -1""")
    def pproc(B, ahead):
        a(f"s_waitcnt vmcnt({ahead})")
        check(ACC, B, True); check(ACC, B+4, False)
        a(f"""v_perm_b32 v{AT+3}, v{B+1}, v{B}, {sUN}
        v_perm_b32 v{AT+7}, v{B+5}, v{B+4}, {sUN}
        v_cmp_ne_u32 vcc, 0, v{ACC}
        v_lshl_or_b32 v{AT+3}, v{B+2}, 24, v{AT+3}
        v_lshl_or_b32 v{AT+7}, v{B+6}, 24, v{AT+7}
        v_pk_add_f32 v[{AT}:{AT+1}], v[{B}:{B+1}], v[{B+4}:{B+5}]
        v_add_f32 v{AT+2}, v{B+2}, v{B+6}
        v_add_f32 v{AT+3}, v{AT+3}, v{AT+7}""")
    a(f"s_mov_b32 exec_hi, -1")
    for B in (PA, PB):
        a(f"""v_mov_b32 v{B+4}, 0
        v_mov_b32 v{B+5}, 0
        v_mov_b32 v{B+6}, 0
        v_mov_b32 v{B+7}, {sTAG}""")
    pissue(PA)
    a(f"""s_load_dwordx2 {OUT}, s[0:1], 64
    s_waitcnt lgkmcnt(0)
    s_barrier
    ds_read_u16 v{HV}, v{aC} offset:{HVEC}
    s_movk_i32 {sCNT}, {spin-1}
    s_waitcnt lgkmcnt(0)
    v_lshlrev_b32 v{HV}, 16, v{HV}""")
    if o.get("p2", 1):
        a("L_PPOLL:")
        pissue(PB)
        pproc(PA, 2)
        a("s_cbranch_vccz L_POK")
        pissue(PA)
        a(f"s_sub_u32 {sCNT}, {sCNT}, 1\ns_cbranch_scc1 L_POK")
        pproc(PB, 2)
        a("s_cbranch_vccnz L_PPOLL")
    else:
        a("s_branch L_PCHK\nL_PPOLL:")
        pissue(PA)
        a(f"s_sub_u32 {sCNT}, {sCNT}, 1\ns_cbranch_scc1 L_POK\nL_PCHK:")
        pproc(PA, 0)
        a("s_cbranch_vccnz L_PPOLL")
    a("L_POK:")
    stamp(9)
    a(f"""v_permlane32_swap_b32 v{AT}, v{AT+1}
    v_permlane32_swap_b32 v{AT+2}, v{AT+3}
    v_add_f32 v{AT}, v{AT}, v{AT+1}
    v_add_f32 v{AT+2}, v{AT+2}, v{AT+3}
    v_permlane16_swap_b32 v{AT}, v{AT+2}
    v_add_f32 v{AT}, v{AT}, v{AT+2}""")
    for r in (8, 4, 2): a(f"v_add_f32_dpp v{AT}, v{AT}, v{AT} row_ror:{r} {DPPF}")
    bf(AT)
    a(f"""s_mov_b32 exec_lo, 0x00030003
    s_mov_b32 exec_hi, 0x00030003
    v_add_f32 v{AT}, v{AT}, v{HV}
    v_cvt_pk_bf16_f32 v{AT}, v{AT}, v{AT}
    global_store_short v{aC}, v{AT}, {OUT}
    s_or_b32 s32, {sIDX}, {sW}
    s_cmp_lg_u32 s32, 0""")
    stamp(10)
    a(f"""s_cbranch_scc1 L_DONE
    s_mov_b64 exec, 1
    v_mov_b32 v{T0}, 0
    global_store_dword v{T0}, v{ST+3}, {WS} sc1""")
    a("L_DONE:")
    if stamps:
        a(f"""s_waitcnt vmcnt(0)
        s_mov_b64 exec, 1
        s_lshl2_add_u32 s32, s2, {sW}
        s_mul_i32 s32, s32, {15*8}
        s_add_u32 s32, s32, 0x8000000
        v_mov_b32 v{T0}, s32
        s_waitcnt lgkmcnt(0)""")
        if o.get("dbgst"):
            a(f"s_load_dwordx2 {DBG}, s[0:1], 72\ns_waitcnt lgkmcnt(0)\nv_mov_b32 v{T0+4}, 0\nv_not_b32 v{T0+2}, s60\nglobal_atomic_umax v{T0+4}, v{T0+2}, {DBG}")
            for pos, k in ((1, 0), (2, 3), (3, 5), (4, 7), (14, 2), (15, 4)):
                a(f"v_mov_b32 v{T0+2}, s{60+2*k}\nglobal_atomic_umax v{T0+4}, v{T0+2}, {DBG} offset:{4*pos}")
            a(f"s_mul_i32 s32, {sROLE}, 12\nv_mov_b32 v{T0+4}, s32")
            for pos, k in ((5, 8), (6, 9), (7, 10)):
                a(f"v_mov_b32 v{T0+2}, s{60+2*k}\nglobal_atomic_umax v{T0+4}, v{T0+2}, {DBG} offset:{4*pos}")
        for k in range(15):
            a(f"v_mov_b32 v{T0+2}, s{60+2*k}\nv_mov_b32 v{T0+3}, s{61+2*k}\nglobal_store_dwordx2 v{T0}, v[{T0+2}:{T0+3}], {WS} offset:{8*k}")
    a("L_END:\ns_endpgm")
    a(f".fill (16896 - (. - {NAME}_kernel)) / 4, 4, 0xbf810000")
    lines = haz.pad(a.lines)
    return wrap("\n".join(lines) + "\n", 256, 256, LDSSZ, 256)

if __name__ == "__main__":
    for spec in sys.argv[1:]:
        name, _, kv = spec.partition(":")
        d = {}
        for p in kv.split(","):
            if p:
                k, v = p.split("="); d[k] = int(v) if v.lstrip("-").isdigit() else v
        kw = {k: d.pop(k) for k in ("nvb", "stamps") if k in d}
        open(name + ".s", "w").write(gen(o=d, **kw))
```
